```python
import torch

def _softmax(x, axis=-1):
    return torch.softmax(x, dim=axis)
def _gelu(x):
    return torch.nn.functional.gelu(x, approximate="tanh")
def _silu(x):
    return torch.nn.functional.silu(x)
def _sigmoid(x):
    return torch.sigmoid(x)
def _layernorm(x, axis=-1, eps=1e-5):
    m = x.mean(dim=axis, keepdim=True)
    v = x.var(dim=axis, keepdim=True, unbiased=False)
    return (x - m) / torch.sqrt(v + eps)
def _scatter_add(tgt, idx, src, axis=0):
    return tgt.clone().index_add_(axis, idx, src)
def _segment_sum(src, seg, n):
    out = torch.zeros((n,) + src.shape[1:], dtype=src.dtype)
    return out.index_add_(0, seg, src)
def _pad(x, pw):
    flat = tuple(v for pair in reversed(pw) for v in pair)
    return torch.nn.functional.pad(x, flat)

kernel_name = 'standalone__gqa_softmax__sampling'

def setup_inputs():

    _w = (lambda a: (lambda t: t.to(torch.bfloat16) if t.is_floating_point() else t)(torch.as_tensor(a)))
    B, Hq, Hkv, Sq, Sk, D = 16, 32, 8, 1, 4096, 128
    return {
        "q": _w((lambda *s: torch.randn(*s, dtype=torch.bfloat16) * 0.8)(B, Hq, Sq, D)),
        "k": _w((lambda *s: torch.randn(*s, dtype=torch.bfloat16) * 0.8)(B, Hkv, Sk, D)),
        "v": _w((lambda *s: torch.randn(*s, dtype=torch.bfloat16) * 0.05)(B, Hkv, Sk, D)),
    }

def reference(q, k, v):
    B, Hq, Sq, D = q.shape
    Hkv = k.shape[1]
    rep = Hq // Hkv
    k = (lambda x, n, axis: torch.repeat_interleave(x, n, dim=axis))(k, rep, axis=1)
    v = (lambda x, n, axis: torch.repeat_interleave(x, n, dim=axis))(v, rep, axis=1)
    scale = D ** -0.5
    scores = torch.einsum("bhqd,bhkd->bhqk", q, k) * scale
    p = _softmax(scores, axis=-1)
    return torch.einsum("bhqk,bhkd->bhqd", p, v)
```

```python
import re

TRANS = ("v_exp_f32", "v_log_f32", "v_rcp_f32", "v_rsq_f32", "v_sqrt_f32", "v_sin_f32", "v_cos_f32")

def regs_of(tok):
    tok = tok.strip()
    neg = tok.startswith("-")
    if neg:
        tok = tok[1:]
    if tok.startswith("abs(") or tok.startswith("|"):
        tok = tok.strip("|")
        tok = tok.replace("abs(", "").rstrip(")")
    m = re.fullmatch(r"([vas])(\d+)", tok)
    if m:
        return {(m.group(1), int(m.group(2)))}
    m = re.fullmatch(r"([vas])\[(\d+):(\d+)\]", tok)
    if m:
        return {(m.group(1), i) for i in range(int(m.group(2)), int(m.group(3)) + 1)}
    if tok == "vcc":
        return {("s", "vcc")}
    if tok == "exec":
        return {("s", "exec")}
    if tok == "m0":
        return {("s", "m0")}
    return set()

class Ins:
    def __init__(self, text):
        self.text = text
        t = text.split(";")[0].strip()
        self.label = t.endswith(":")
        self.op = t.split()[0] if t else ""
        rest = t[len(self.op):].strip()
        ops, cur, depth = [], "", 0
        for ch in rest:
            if ch == "[":
                depth += 1
            if ch == "]":
                depth -= 1
            if ch == "," and depth == 0:
                ops.append(cur); cur = ""
            else:
                cur += ch
        if cur.strip():
            ops.append(cur)
        mods = ""
        if ops:
            last = ops[-1].strip().split(None, 1)
            ops[-1] = last[0]
            mods = last[1] if len(last) > 1 else ""
        self.ops = [o.strip() for o in ops]
        self.mods = mods
        op = self.op
        self.kind = "other"
        self.w = set(); self.r = set()
        self.dpp = "_dpp" in op
        self.perml = op.startswith("v_permlane")
        self.rdlane = op.startswith("v_readlane") or op.startswith("v_readfirstlane")
        self.states = 1
        self.srcc = set()
        self.ab = set()
        R = [regs_of(o) for o in self.ops]
        if op == "s_nop":
            self.states = int(self.ops[0], 0) + 1
        elif op.startswith("v_mfma"):
            self.kind = "mfma"
            self.w = R[0]; self.ab = R[1] | R[2]; self.srcc = R[3]; self.r = self.ab | self.srcc
            self.passes = 8 if "32x32" in op else 4
        elif op.startswith("v_"):
            self.kind = "valu"
            self.trans = any(op.startswith(x) for x in TRANS)
            if self.perml and "swap" in op:
                self.w = R[0] | R[1]; self.r = R[0] | R[1]
            elif op.startswith("v_cmp"):
                self.w = R[0]; self.r = set().union(*R[1:])
            elif "_co_" in op:
                self.w = R[0] | R[1]; self.r = set().union(*R[2:])
            else:
                self.w = R[0]; self.r = set().union(*R[1:]) if len(R) > 1 else set()
                if op.startswith("v_fmac") or op.startswith("v_dot2c"):
                    self.r |= R[0]
                if self.dpp:
                    self.r |= R[0]
                if op.startswith("v_cndmask") and len(self.ops) == 3:
                    self.r |= {("s", "vcc")}
        elif op.startswith("buffer_") or op.startswith("global_"):
            self.kind = "vmem"
            if "load" in op and "lds" not in self.mods.split():
                self.w = R[0]; self.r = set().union(*R[1:])
            else:
                self.r = set().union(*R)
                self.store_data = R[0] if op.startswith("buffer_") else (R[1] if len(R) > 1 else set())
                self.wide = ("x3" in op or "x4" in op) and "store" in op
        elif op.startswith("ds_"):
            self.kind = "ds"
            if "read" in op or "permute" in op or "swizzle" in op:
                self.w = R[0]; self.r = set().union(*R[1:])
            else:
                self.r = set().union(*R)
        elif op.startswith("s_load") or op.startswith("s_memrealtime") or op.startswith("s_memtime"):
            self.kind = "smem"; self.w = R[0]; self.r = set().union(*R[1:]) if len(R) > 1 else set()
        elif op.startswith("s_") and not op.startswith(("s_waitcnt", "s_barrier", "s_branch", "s_cbranch", "s_endpgm", "s_sleep", "s_setprio", "s_cmp")):
            self.kind = "salu"; self.w = R[0] if R else set(); self.r = set().union(*R[1:]) if len(R) > 1 else set()
        elif op.startswith("s_cmp"):
            self.kind = "salu"; self.r = set().union(*R)

def need(p, c):
    n = 0
    pv = {x for x in p.w if x[0] in "va"}
    ps = {x for x in p.w if x[0] == "s"}
    if p.kind == "valu":
        if c.kind == "valu" and c.dpp and pv & c.r: n = max(n, 2)
        if c.kind == "valu" and c.perml and pv & c.r: n = max(n, 2)
        if c.kind == "valu" and c.rdlane and pv & c.r: n = max(n, 1)
        if c.kind == "mfma" and pv & c.r: n = max(n, 2)
        if getattr(p, "trans", False) and c.kind == "valu" and (pv & c.r): n = max(n, 1)
        if getattr(p, "trans", False) and c.kind in ("vmem", "ds", "mfma") and (pv & c.r): n = max(n, 2)
        if ps and c.kind == "valu" and ps & c.r: n = max(n, 4 if c.rdlane else 2)
        if ps and c.kind == "vmem" and ps & c.r: n = max(n, 5)
        if ps and c.kind in ("salu", "smem") and ps & c.r: n = max(n, 2)
        if ("s", "vcc") in ps and c.op.startswith("s_cbranch_vcc"): n = max(n, 5)
    if p.kind == "mfma":
        big = {4: 8, 8: 12}[p.passes]
        ovl = {4: 6, 8: 10}[p.passes]
        war = {4: 3, 8: 7}[p.passes]
        if c.kind == "mfma":
            if pv & c.ab: n = max(n, big)
            if pv & c.srcc and not (pv == c.srcc and c.passes == p.passes): n = max(n, ovl)
            if pv & c.w and not (pv == c.srcc): n = max(n, big)
        elif c.kind in ("valu", "vmem", "ds"):
            if pv & (c.r | c.w): n = max(n, big)
            if c.kind == "valu" and p.srcc & c.w: n = max(n, war)
    if p.kind == "vmem" and getattr(p, "wide", False):
        if c.kind in ("valu", "mfma", "vmem", "ds") and p.store_data & c.w: n = max(n, 2)
    if p.kind == "salu" and ("s", "m0") in p.w and c.kind == "vmem" and "lds" in c.mods.split(): n = max(n, 1)
    return n

def fix_hazards(lines, window=24):
    out = []
    for t in lines:
        c = Ins(t)
        if not c.op or c.label or c.op.startswith("."):
            out.append(c); continue
        dist = 0; req = 0
        for p in reversed(out[-window * 2:]):
            if not p.op or p.label or p.op.startswith("."):
                continue
            n = need(p, c)
            if n > dist:
                req = max(req, n - dist)
            dist += p.states
            if dist > window:
                break
        while req > 0:
            k = min(req, 16)
            out.append(Ins(f"  s_nop {k-1}"))
            req -= k
        out.append(c)
    return [i.text for i in out]

def check_seam(body_lines):
    once = fix_hazards(body_lines)
    twice = fix_hazards(once + once)
    return len(twice) == 2 * len(once)
```

```python
import sys, struct, math
from asmlib import fix_hazards, check_seam
KN = "standalone__gqa_softmax__sampling_kernel"

def f2u(x):
    return struct.unpack("<I", struct.pack("<f", x))[0]

def gen(W=4, NBUF=2, flags="nt", pairint=False, stamps=False, codepf=False):
    nblk = 64 // W
    BLK = 8192
    if pairint:
        half_off, stride = W * BLK, 2 * W * BLK
    else:
        half_off, stride = 512 * 1024, W * BLK
    C = 128 ** -0.5 * math.log2(math.e)
    o = []
    A = lambda s: o.append("  " + s)
    Lb = lambda s: o.append(s + ":")
    vKo0, vKo1, vVo0, vVo1 = 1, 2, 3, 4
    vT0, vT1, vT2 = 5, 6, 7
    Q = 8
    D1, D2 = 12, 16
    vNM, vL, vAl, vMx, vTm, vD = 20, 21, 22, 23, 24, 25
    vLane = 26
    Z = [32, 33]
    P = [34, 35]
    Plo = [36, 38]; Phi = [37, 39]
    X = 40
    S = 56
    NV = 88
    def aK(b, t): r = b * 64 + t * 4; return f"a[{r}:{r+3}]"
    def aV(b, t, hf): r = b * 64 + 32 + t * 4 + hf * 2; return f"a[{r}:{r+1}]"
    def aV4(b, t): r = b * 64 + 32 + t * 4; return f"a[{r}:{r+3}]"
    def stamp(i):
        if stamps:
            A(f"s_memrealtime s[{40+2*i}:{41+2*i}]")
    def loadK(b):
        for t in range(8):
            A(f"buffer_load_dwordx4 {aK(b,t)}, v{vKo0 if t < 4 else vKo1}, s[4:7], s30 offen offset:{(t%4)*1024} {flags}")
    def loadV(b):
        for t in range(8):
            A(f"buffer_load_dwordx4 {aV4(b,t)}, v{vVo0 if t < 4 else vVo1}, s[8:11], s30 offen offset:{(t%4)*1024} {flags}")
        A(f"s_add_u32 s30, s30, {stride}")
    def block(b, wk, wv, nxt):
        A(f"s_waitcnt vmcnt({wk})")
        for t in range(8):
            A(f"v_mfma_f32_16x16x32_bf16 v[{S+4*t}:{S+4*t+3}], {aK(b,t)}, v[{Q}:{Q+3}], 0")
        if nxt:
            loadK(b)
        for t in range(8):
            tt = t & 3
            r = lambda j: S + 4 * t + ((tt + j) & 3)
            A(f"v_add_f32_dpp v{r(0)}, v{r(1)}, v{r(0)} row_ror:12 row_mask:0xf bank_mask:0xf")
            A(f"v_add_f32_dpp v{r(2)}, v{r(3)}, v{r(2)} row_ror:12 row_mask:0xf bank_mask:0xf")
        for tt in range(4):
            for u in range(2):
                t = 4 * u + tt
                r = lambda j: S + 4 * t + ((tt + j) & 3)
                A(f"v_add_f32_dpp v{Z[u]}, v{r(2)}, v{r(0)} row_ror:8 row_mask:0xf bank_mask:{1<<tt:#x}")
        A(f"v_max_f32 v{vMx}, v{Z[0]}, v{Z[1]}")
        A(f"v_max_f32_dpp v{vMx}, v{vMx}, v{vMx} row_ror:4 row_mask:0xf bank_mask:0xf")
        A(f"v_max_f32_dpp v{vMx}, v{vMx}, v{vMx} row_ror:8 row_mask:0xf bank_mask:0xf")
        A(f"v_mov_b32 v{vTm}, v{vMx}")
        A(f"v_permlane16_swap_b32 v{vTm}, v{vMx}")
        A(f"v_max_f32 v{vMx}, v{vTm}, v{vMx}")
        A(f"v_mov_b32 v{vTm}, v{vMx}")
        A(f"v_permlane32_swap_b32 v{vTm}, v{vMx}")
        A(f"v_max_f32 v{vMx}, v{vTm}, v{vMx}")
        A(f"v_mul_f32 v{vMx}, s33, v{vMx}")
        A(f"v_min_f32 v{vMx}, v{vMx}, v{vNM}")
        A(f"v_sub_f32 v{vD}, v{vMx}, v{vNM}")
        A(f"v_fma_f32 v{P[0]}, v{Z[0]}, s32, v{vMx}")
        A(f"v_fma_f32 v{P[1]}, v{Z[1]}, s32, v{vMx}")
        A(f"v_exp_f32 v{vAl}, v{vD}")
        A(f"v_exp_f32 v{P[0]}, v{P[0]}")
        A(f"v_exp_f32 v{P[1]}, v{P[1]}")
        A(f"v_mov_b32 v{vNM}, v{vMx}")
        for u in range(2):
            A(f"v_cvt_pk_bf16_f32 v{Plo[u]}, v{P[u]}, 0")
            A(f"v_cvt_pk_bf16_f32 v{Phi[u]}, 0, v{P[u]}")
        A(f"v_fma_f32 v{vL}, v{vL}, v{vAl}, v{P[0]}")
        A(f"v_add_f32 v{vL}, v{vL}, v{P[1]}")
        for j in range(4):
            A(f"v_mul_f32_dpp v{D1+j}, v{vAl}, v{D1+j} quad_perm:[{j},{j},{j},{j}] row_mask:0xf bank_mask:0xf")
            A(f"v_mul_f32_dpp v{D2+j}, v{vAl}, v{D2+j} quad_perm:[{j},{j},{j},{j}] row_mask:0xf bank_mask:0xf")
        for e in range(4):
            for t in range(8):
                u, tt = t >> 2, t & 3
                src = (Plo if e % 2 == 0 else Phi)[u]
                dst = X + 2 * t + (e >> 1)
                rot = (4 * (e - tt)) % 16
                ctl = "quad_perm:[0,1,2,3]" if rot == 0 else f"row_ror:{rot}"
                A(f"v_mov_b32_dpp v{dst}, v{src} {ctl} row_mask:0xf bank_mask:{1<<e:#x}")
        A(f"s_waitcnt vmcnt({wv})")
        for t in range(8):
            A(f"v_mfma_f32_16x16x16_bf16 v[{D1}:{D1+3}], v[{X+2*t}:{X+2*t+1}], {aV(b,t,0)}, v[{D1}:{D1+3}]")
            A(f"v_mfma_f32_16x16x16_bf16 v[{D2}:{D2+3}], v[{X+2*t}:{X+2*t+1}], {aV(b,t,1)}, v[{D2}:{D2+3}]")
        if nxt:
            loadV(b)

    lds = W * 2048 + W * 32
    hdr = [f"; @launch grid=(256,1,1) block=({W*64},1,1) lds={lds}",
           '.amdgcn_target "amdgcn-amd-amdhsa--gfx950"', ".text", f".globl {KN}", ".p2align 8",
           f".type {KN},@function", f"{KN}:"]
    A("s_cmp_ge_u32 s2, 256")
    A("s_cbranch_scc1 L_end")
    A("s_load_dwordx2 s[12:13], s[0:1], 0")
    A("s_load_dwordx2 s[4:5], s[0:1], 8")
    A("s_load_dwordx2 s[8:9], s[0:1], 16")
    A("s_load_dwordx2 s[16:17], s[0:1], 24")
    A("s_load_dwordx2 s[20:21], s[0:1], 32")
    A("s_load_dwordx2 s[24:25], s[0:1], 40")
    stamp(0)
    A("v_lshrrev_b32 v5, 6, v0")
    A(f"v_and_b32 v{vLane}, 63, v0")
    A("v_readfirstlane_b32 s3, v5")
    A("s_and_b32 s28, s2, 127")
    A("s_lshr_b32 s29, s2, 7")
    A("s_mov_b32 s6, 0x8000000"); A("s_mov_b32 s7, 0x20000")
    A("s_mov_b32 s10, 0x8000000"); A("s_mov_b32 s11, 0x20000")
    A("s_mov_b32 s14, 0x20000"); A("s_mov_b32 s15, 0x20000")
    A("s_mov_b32 s18, 0x20000"); A("s_mov_b32 s19, 0x20000")
    A("s_mov_b32 s22, 256"); A("s_mov_b32 s23, 0x20000")
    A("s_mov_b32 s26, 0x20000000"); A("s_mov_b32 s27, 0x20000")
    A(f"v_bfe_u32 v{vT0}, v{vLane}, 2, 2")
    A(f"v_lshrrev_b32 v{vT1}, 4, v{vLane}")
    A(f"v_and_b32 v{vT2}, 3, v{vLane}")
    A(f"v_lshlrev_b32 v{vT1}, 6, v{vT1}")
    A(f"v_lshl_add_u32 v{vKo0}, v{vT0}, 8, v{vT1}")
    A(f"v_lshl_add_u32 v{vKo0}, v{vT2}, 4, v{vKo0}")
    A(f"v_lshl_add_u32 v{vTm}, v{vT2}, 8, v{vT1}")
    A(f"v_lshl_add_u32 v{vTm}, v{vT0}, 4, v{vTm}")
    A(f"v_add_u32 v{vKo1}, 4096, v{vKo0}")
    A(f"v_lshlrev_b32 v{vVo0}, 4, v{vLane}")
    A(f"v_add_u32 v{vVo1}, 4096, v{vVo0}")
    A("s_lshl_b32 s30, s28, 20")
    A(f"s_mul_i32 s34, s29, {half_off}")
    A("s_add_u32 s30, s30, s34")
    A(f"s_lshl_b32 s34, s3, 13")
    A("s_add_u32 s30, s30, s34")
    A("s_lshl_b32 s35, s28, 10")
    A("s_lshl_b32 s36, s28, 12")
    A("s_or_b32 s37, s29, s3")
    A("s_waitcnt lgkmcnt(0)")
    A("s_cmp_lg_u32 s37, 0")
    A("s_cbranch_scc1 L_noclean")
    for i in range(4):
        A(f"v_mov_b32 v{S+i}, -1")
    for i in range(4):
        A(f"buffer_store_dwordx4 v[{S}:{S+3}], v{vVo0}, s[24:27], s36 offen offset:{i*1024} sc1")
    Lb("L_noclean")
    A(f"buffer_load_dwordx4 v[{Q}:{Q+3}], v{vTm}, s[12:15], s35 offen")
    for b in range(NBUF):
        loadK(b); loadV(b)
    A(f"s_mov_b32 s32, {f2u(C):#x}")
    A(f"s_mov_b32 s33, {f2u(-C):#x}")
    A(f"v_mov_b32 v{vNM}, 0x7f800000")
    A(f"v_mov_b32 v{vL}, 0")
    for j in range(4):
        A(f"v_mov_b32 v{D1+j}, 0"); A(f"v_mov_b32 v{D2+j}, 0")
    for j in range(16):
        A(f"v_mov_b32 v{X+j}, 0")
    A("s_and_b32 s34, s28, 63")
    A("s_lshl_b32 s38, s34, 2")
    A("s_lshr_b32 s34, s28, 6")
    A("s_lshl_b32 s39, 1, s34")
    A("s_cmp_lg_u32 s37, 0")
    A("s_cbranch_scc1 L_noflag")
    A(f"v_mov_b32 v{vT0}, s39")
    A(f"v_mov_b32 v{vT1}, 0")
    A(f"s_waitcnt vmcnt({16*NBUF+1})")
    A("s_mov_b64 exec, 1")
    A(f"buffer_atomic_or v{vT0}, v{vT1}, s[20:23], s38 offen sc1")
    A("s_mov_b64 exec, -1")
    Lb("L_noflag")
    full = 16 * NBUF - 8
    nloop = (nblk - NBUF) // NBUF
    rem = (nblk - NBUF) % NBUF
    if stamps:
        A(f"s_waitcnt vmcnt({full})")
        stamp(1)
    order = list(range(NBUF))
    for i in range(rem):
        block(order[0], full, full, True)
        order = order[1:] + order[:1]
    if nloop > 0:
        A(f"s_mov_b32 s31, {nloop}")
        Lb("L_loop")
        start = len(o)
        for b in order:
            block(b, full, full, True)
        A("s_sub_u32 s31, s31, 1")
        A("s_cmp_lg_u32 s31, 0")
        A("s_cbranch_scc1 L_loop")
        assert check_seam(o[start:])
    for i, b in enumerate(order):
        left = NBUF - i
        block(b, 16 * left - 8, 16 * left - 16, False)
    stamp(2)
    A(f"v_add_f32_dpp v{vL}, v{vL}, v{vL} row_ror:4 row_mask:0xf bank_mask:0xf")
    A(f"v_add_f32_dpp v{vL}, v{vL}, v{vL} row_ror:8 row_mask:0xf bank_mask:0xf")
    A(f"v_mov_b32 v{vTm}, v{vL}")
    A(f"v_permlane16_swap_b32 v{vTm}, v{vL}")
    A(f"v_add_f32 v{vL}, v{vTm}, v{vL}")
    A(f"v_mov_b32 v{vTm}, v{vL}")
    A(f"v_permlane32_swap_b32 v{vTm}, v{vL}")
    A(f"v_add_f32 v{vL}, v{vTm}, v{vL}")
    A(f"v_and_b32 v{vT0}, 15, v{vLane}")
    A(f"v_lshrrev_b32 v{vT1}, 4, v{vLane}")
    A(f"v_lshlrev_b32 v{vT0}, 5, v{vT0}")
    A(f"v_lshl_add_u32 v{vT0}, v{vT1}, 2, v{vT0}")
    A("s_lshl_b32 s34, s3, 11")
    A(f"v_add_u32 v{vT0}, s34, v{vT0}")
    A("s_lshl_b32 s34, s3, 5")
    A(f"s_add_u32 s34, s34, {W*2048}")
    A(f"v_lshlrev_b32 v{vT1}, 3, v{vT2}")
    A(f"v_add_u32 v{vT1}, s34, v{vT1}")
    for j in range(4):
        A(f"ds_write_b32 v{vT0}, v{D1+j} offset:{j*512}")
        A(f"ds_write_b32 v{vT0}, v{D2+j} offset:{j*512+16}")
    A("s_mov_b64 exec, 15")
    A(f"ds_write_b64 v{vT1}, v[{vNM}:{vNM+1}]")
    A("s_mov_b64 exec, -1")
    A("s_waitcnt lgkmcnt(0)")
    A("s_barrier")
    if W > 4:
        A("s_cmp_ge_u32 s3, 4")
        A("s_cbranch_scc1 L_end")
    O = S
    ML = S + 16
    A("s_lshl_b32 s34, s3, 9")
    A(f"v_lshlrev_b32 v{vT0}, 3, v{vLane}")
    A(f"v_add_u32 v{vT0}, s34, v{vT0}")
    A("s_lshl_b32 s34, s3, 3")
    A(f"s_add_u32 s34, s34, {W*2048}")
    A(f"v_mov_b32 v{vT1}, s34")
    for w in range(W):
        A(f"ds_read_b64 v[{ML+2*w}:{ML+2*w+1}], v{vT1} offset:{w*32}")
    for w in range(W):
        A(f"ds_read_b64 v[{O+2*w}:{O+2*w+1}], v{vT0} offset:{w*2048}")
    G = 40
    A(f"s_waitcnt lgkmcnt({W})")
    A(f"v_min_f32 v{G+2}, v{ML}, v{ML+2}")
    for w in range(2, W):
        A(f"v_min_f32 v{G+2}, v{G+2}, v{ML+2*w}")
    for w in range(W):
        A(f"v_sub_f32 v{ML+2*w}, v{G+2}, v{ML+2*w}")
    for w in range(W):
        A(f"v_exp_f32 v{ML+2*w}, v{ML+2*w}")
    A(f"v_mul_f32 v{G+3}, v{ML}, v{ML+1}")
    for w in range(1, W):
        A(f"v_fma_f32 v{G+3}, v{ML+2*w}, v{ML+2*w+1}, v{G+3}")
    A("s_waitcnt lgkmcnt(0)")
    A(f"v_mul_f32 v{G}, v{ML}, v{O}")
    A(f"v_mul_f32 v{G+1}, v{ML}, v{O+1}")
    for w in range(1, W):
        A(f"v_fma_f32 v{G}, v{ML+2*w}, v{O+2*w}, v{G}")
        A(f"v_fma_f32 v{G+1}, v{ML+2*w}, v{O+2*w+1}, v{G+1}")
    A(f"v_lshlrev_b32 v{vT0}, 4, v0")
    A("s_cmp_lg_u32 s29, 0")
    A("s_cbranch_scc1 L_consumer")
    for i in range(4):
        A(f"v_min_u32 v{G+i}, -2, v{G+i}")
    A(f"buffer_store_dwordx4 v[{G}:{G+3}], v{vT0}, s[24:27], s36 offen sc1")
    A("s_branch L_fin")
    Lb("L_consumer")
    H = 44
    A(f"v_mov_b32 v{vT1}, 0")
    A("s_mov_b32 s31, 0x400000")
    Lb("L_pollflag")
    A(f"buffer_load_dword v{H}, v{vT1}, s[20:23], s38 offen sc1")
    A("s_sub_u32 s31, s31, 1")
    A("s_cbranch_scc1 L_gotflag")
    A("s_waitcnt vmcnt(0)")
    A(f"v_and_b32 v{H}, s39, v{H}")
    A(f"v_cmp_eq_u32 vcc, 0, v{H}")
    A("s_cbranch_vccnz L_pollflag")
    Lb("L_gotflag")
    A("s_waitcnt vmcnt(0)")
    A("s_mov_b32 s31, 0x400000")
    Lb("L_poll")
    A(f"buffer_load_dwordx4 v[{H}:{H+3}], v{vT0}, s[24:27], s36 offen sc1")
    A("s_sub_u32 s31, s31, 1")
    A("s_cbranch_scc1 L_got")
    A("s_waitcnt vmcnt(0)")
    A(f"v_max3_u32 v{vT1}, v{H}, v{H+1}, v{H+2}")
    A(f"v_max_u32 v{vT1}, v{vT1}, v{H+3}")
    A(f"v_cmp_eq_u32 vcc, -1, v{vT1}")
    A("s_cbranch_vccnz L_poll")
    Lb("L_got")
    A("s_waitcnt vmcnt(0)")
    A(f"v_min_f32 v{vMx}, v{G+2}, v{H+2}")
    A(f"v_sub_f32 v{G+2}, v{vMx}, v{G+2}")
    A(f"v_sub_f32 v{H+2}, v{vMx}, v{H+2}")
    A(f"v_exp_f32 v{G+2}, v{G+2}")
    A(f"v_exp_f32 v{H+2}, v{H+2}")
    A(f"v_mul_f32 v{G+3}, v{G+2}, v{G+3}")
    A(f"v_fma_f32 v{G+3}, v{H+2}, v{H+3}, v{G+3}")
    A(f"v_rcp_f32 v{G+3}, v{G+3}")
    A(f"v_mul_f32 v{G}, v{G+2}, v{G}")
    A(f"v_mul_f32 v{G+1}, v{G+2}, v{G+1}")
    A(f"v_fma_f32 v{G}, v{H+2}, v{H}, v{G}")
    A(f"v_fma_f32 v{G+1}, v{H+2}, v{H+1}, v{G+1}")
    A(f"v_mul_f32 v{G}, v{G+3}, v{G}")
    A(f"v_mul_f32 v{G+1}, v{G+3}, v{G+1}")
    A(f"v_cvt_pk_bf16_f32 v{G}, v{G}, v{G+1}")
    A(f"v_lshlrev_b32 v{vT0}, 2, v0")
    A(f"buffer_store_dword v{G}, v{vT0}, s[16:19], s35 offen")
    Lb("L_fin")
    if stamps:
        A("s_waitcnt vmcnt(0)")
        stamp(3)
        A("s_waitcnt lgkmcnt(0)")
        for i in range(8):
            A(f"v_mov_b32 v{S+i}, s{40+i}")
        A(f"s_mul_i32 s34, s2, {W}")
        A("s_add_u32 s34, s34, s3")
        A("s_lshl_b32 s34, s34, 5")
        A("s_add_u32 s34, s34, 0x10000000")
        A(f"v_mov_b32 v{vT1}, 0")
        A("s_mov_b64 exec, 1")
        A(f"buffer_store_dwordx4 v[{S}:{S+3}], v{vT1}, s[24:27], s34 offen")
        A(f"buffer_store_dwordx4 v[{S+4}:{S+7}], v{vT1}, s[24:27], s34 offen offset:16")
    Lb("L_end")
    A("s_endpgm")
    body = fix_hazards(o)
    nacc = 64 * NBUF
    tail = ['.section .rodata,"a"', ".p2align 6", f".amdhsa_kernel {KN}",
            f"  .amdhsa_next_free_vgpr {NV + nacc}", "  .amdhsa_next_free_sgpr 56", f"  .amdhsa_accum_offset {NV}",
            "  .amdhsa_group_segment_fixed_size 0", "  .amdhsa_kernarg_size 48", "  .amdhsa_user_sgpr_count 2",
            "  .amdhsa_user_sgpr_kernarg_segment_ptr 1", "  .amdhsa_system_sgpr_workgroup_id_x 1", ".end_amdhsa_kernel"]
    return "\n".join(hdr + body + tail) + "\n"

if __name__ == "__main__":
    names = []
    for spec in sys.argv[1:]:
        kw = {}
        for p in spec.split(","):
            k, v = p.split("=")
            kw[k] = v.replace("_", " ") if k == "flags" else int(v)
        fn = "k1_" + spec.replace(",", "-").replace("=", "") + ".s"
        open(fn, "w").write(gen(**kw))
        names.append(fn)
    print(" ".join(names))
```

```python
import sys, struct, math
from asmlib import fix_hazards, check_seam
KN = "standalone__gqa_softmax__sampling_kernel"

def f2u(x):
    return struct.unpack("<I", struct.pack("<f", x))[0]

def gen(W=4, NBUF=2, fk="nt", fv="nt", pairint=False, stamps=False, codepf=False, prog=False):
    nblk = 64 // W
    BLK = 8192
    if pairint:
        half_off, stride = W * BLK, 2 * W * BLK
    else:
        half_off, stride = 512 * 1024, W * BLK
    C = 128 ** -0.5 * math.log2(math.e)
    o = []
    A = lambda s: o.append("  " + s)
    Lb = lambda s: o.append(s + ":")
    vKo0, vKo1, vVo0, vVo1 = 1, 2, 3, 4
    vT0, vT1, vT2 = 5, 6, 7
    Q = 8
    D1, D2 = 12, 16
    vNM, vL, vAl, vMx, vTm, vD = 20, 21, 22, 23, 24, 25
    vLane = 26
    Z = [32, 33]
    P = [34, 35]
    Plo = [36, 38]; Phi = [37, 39]
    X = 40
    S = 56
    NV = 88
    def aK(b, t): r = b * 64 + t * 4; return f"a[{r}:{r+3}]"
    def aV(b, t, hf): r = b * 64 + 32 + t * 4 + hf * 2; return f"a[{r}:{r+1}]"
    def aV4(b, t): r = b * 64 + 32 + t * 4; return f"a[{r}:{r+3}]"
    def stamp(i):
        if stamps:
            A(f"s_memrealtime s[{40+2*i}:{41+2*i}]")
    def pstamp():
        if prog:
            A("s_memrealtime s[50:51]")
            A("s_waitcnt lgkmcnt(0)")
            A("s_sub_u32 s50, s50, s48")
            A("s_mov_b32 m0, s52"); A("s_nop 3"); A("v_writelane_b32 v27, s50, m0")
            A("s_add_u32 s52, s52, 1")
    def loadK(b):
        for t in range(8):
            A(f"buffer_load_dwordx4 {aK(b,t)}, v{vKo0 if t < 4 else vKo1}, s[4:7], s30 offen offset:{(t%4)*1024} {fk}")
    def loadV(b):
        for t in range(8):
            A(f"buffer_load_dwordx4 {aV4(b,t)}, v{vVo0 if t < 4 else vVo1}, s[8:11], s30 offen offset:{(t%4)*1024} {fv}")
        A(f"s_add_u32 s30, s30, {stride}")
    def block(b, wk, wv, nxt):
        A(f"s_waitcnt vmcnt({wk})")
        for t in range(8):
            A(f"v_mfma_f32_16x16x32_bf16 v[{S+4*t}:{S+4*t+3}], {aK(b,t)}, v[{Q}:{Q+3}], 0")
        if nxt:
            loadK(b)
        for t in range(8):
            tt = t & 3
            r = lambda j: S + 4 * t + ((tt + j) & 3)
            A(f"v_add_f32_dpp v{r(0)}, v{r(1)}, v{r(0)} row_ror:12 row_mask:0xf bank_mask:0xf")
            A(f"v_add_f32_dpp v{r(2)}, v{r(3)}, v{r(2)} row_ror:12 row_mask:0xf bank_mask:0xf")
        for tt in range(4):
            for u in range(2):
                t = 4 * u + tt
                r = lambda j: S + 4 * t + ((tt + j) & 3)
                A(f"v_add_f32_dpp v{Z[u]}, v{r(2)}, v{r(0)} row_ror:8 row_mask:0xf bank_mask:{1<<tt:#x}")
        A(f"v_max_f32 v{vMx}, v{Z[0]}, v{Z[1]}")
        A(f"v_max_f32_dpp v{vMx}, v{vMx}, v{vMx} row_ror:4 row_mask:0xf bank_mask:0xf")
        A(f"v_max_f32_dpp v{vMx}, v{vMx}, v{vMx} row_ror:8 row_mask:0xf bank_mask:0xf")
        A(f"v_mov_b32 v{vTm}, v{vMx}")
        A(f"v_permlane16_swap_b32 v{vTm}, v{vMx}")
        A(f"v_max_f32 v{vMx}, v{vTm}, v{vMx}")
        A(f"v_mov_b32 v{vTm}, v{vMx}")
        A(f"v_permlane32_swap_b32 v{vTm}, v{vMx}")
        A(f"v_max_f32 v{vMx}, v{vTm}, v{vMx}")
        A(f"v_mul_f32 v{vMx}, s33, v{vMx}")
        A(f"v_min_f32 v{vMx}, v{vMx}, v{vNM}")
        A(f"v_sub_f32 v{vD}, v{vMx}, v{vNM}")
        A(f"v_fma_f32 v{P[0]}, v{Z[0]}, s32, v{vMx}")
        A(f"v_fma_f32 v{P[1]}, v{Z[1]}, s32, v{vMx}")
        A(f"v_exp_f32 v{vAl}, v{vD}")
        A(f"v_exp_f32 v{P[0]}, v{P[0]}")
        A(f"v_exp_f32 v{P[1]}, v{P[1]}")
        A(f"v_mov_b32 v{vNM}, v{vMx}")
        for u in range(2):
            A(f"v_cvt_pk_bf16_f32 v{Plo[u]}, v{P[u]}, 0")
            A(f"v_cvt_pk_bf16_f32 v{Phi[u]}, 0, v{P[u]}")
        A(f"v_fma_f32 v{vL}, v{vL}, v{vAl}, v{P[0]}")
        A(f"v_add_f32 v{vL}, v{vL}, v{P[1]}")
        for j in range(4):
            A(f"v_mul_f32_dpp v{D1+j}, v{vAl}, v{D1+j} quad_perm:[{j},{j},{j},{j}] row_mask:0xf bank_mask:0xf")
            A(f"v_mul_f32_dpp v{D2+j}, v{vAl}, v{D2+j} quad_perm:[{j},{j},{j},{j}] row_mask:0xf bank_mask:0xf")
        for e in range(4):
            for t in range(8):
                u, tt = t >> 2, t & 3
                src = (Plo if e % 2 == 0 else Phi)[u]
                dst = X + 2 * t + (e >> 1)
                rot = (4 * (e - tt)) % 16
                ctl = "quad_perm:[0,1,2,3]" if rot == 0 else f"row_ror:{rot}"
                A(f"v_mov_b32_dpp v{dst}, v{src} {ctl} row_mask:0xf bank_mask:{1<<e:#x}")
        A(f"s_waitcnt vmcnt({wv})")
        for t in range(8):
            A(f"v_mfma_f32_16x16x16_bf16 v[{D1}:{D1+3}], v[{X+2*t}:{X+2*t+1}], {aV(b,t,0)}, v[{D1}:{D1+3}]")
            A(f"v_mfma_f32_16x16x16_bf16 v[{D2}:{D2+3}], v[{X+2*t}:{X+2*t+1}], {aV(b,t,1)}, v[{D2}:{D2+3}]")
        if nxt:
            loadV(b)

    lds = W * 2048 + W * 32
    hdr = [f"; @launch grid=(256,1,1) block=({W*64},1,1) lds={lds}",
           '.amdgcn_target "amdgcn-amd-amdhsa--gfx950"', ".text", f".globl {KN}", ".p2align 8",
           f".type {KN},@function", f"{KN}:"]
    A("s_cmp_ge_u32 s2, 256")
    A("s_cbranch_scc1 L_end")
    A("s_load_dwordx2 s[12:13], s[0:1], 0")
    A("s_load_dwordx2 s[4:5], s[0:1], 8")
    A("s_load_dwordx2 s[8:9], s[0:1], 16")
    A("s_load_dwordx2 s[16:17], s[0:1], 24")
    A("s_load_dwordx2 s[20:21], s[0:1], 32")
    A("s_load_dwordx2 s[24:25], s[0:1], 40")
    stamp(0)
    if prog:
        A("s_memrealtime s[48:49]")
        A("s_mov_b32 s52, 0")
        A("v_mov_b32 v27, 0")
    A("v_lshrrev_b32 v5, 6, v0")
    A(f"v_and_b32 v{vLane}, 63, v0")
    A("v_readfirstlane_b32 s3, v5")
    A("s_and_b32 s28, s2, 127")
    A("s_lshr_b32 s29, s2, 7")
    A("s_mov_b32 s6, 0x8000000"); A("s_mov_b32 s7, 0x20000")
    A("s_mov_b32 s10, 0x8000000"); A("s_mov_b32 s11, 0x20000")
    A("s_mov_b32 s14, 0x20000"); A("s_mov_b32 s15, 0x20000")
    A("s_mov_b32 s18, 0x20000"); A("s_mov_b32 s19, 0x20000")
    A("s_mov_b32 s22, 256"); A("s_mov_b32 s23, 0x20000")
    A("s_mov_b32 s26, 0x20000000"); A("s_mov_b32 s27, 0x20000")
    A(f"v_bfe_u32 v{vT0}, v{vLane}, 2, 2")
    A(f"v_lshrrev_b32 v{vT1}, 4, v{vLane}")
    A(f"v_and_b32 v{vT2}, 3, v{vLane}")
    A(f"v_lshlrev_b32 v{vT1}, 6, v{vT1}")
    A(f"v_lshl_add_u32 v{vKo0}, v{vT0}, 8, v{vT1}")
    A(f"v_lshl_add_u32 v{vKo0}, v{vT2}, 4, v{vKo0}")
    A(f"v_lshl_add_u32 v{vTm}, v{vT2}, 8, v{vT1}")
    A(f"v_lshl_add_u32 v{vTm}, v{vT0}, 4, v{vTm}")
    A(f"v_add_u32 v{vKo1}, 4096, v{vKo0}")
    A(f"v_lshlrev_b32 v{vVo0}, 4, v{vLane}")
    A(f"v_add_u32 v{vVo1}, 4096, v{vVo0}")
    A("s_lshl_b32 s30, s28, 20")
    A(f"s_mul_i32 s34, s29, {half_off}")
    A("s_add_u32 s30, s30, s34")
    A(f"s_lshl_b32 s34, s3, 13")
    A("s_add_u32 s30, s30, s34")
    A("s_lshl_b32 s35, s28, 10")
    A("s_lshl_b32 s36, s28, 12")
    A("s_or_b32 s37, s29, s3")
    A("s_waitcnt lgkmcnt(0)")
    A("s_cmp_lg_u32 s37, 0")
    A("s_cbranch_scc1 L_noclean")
    for i in range(4):
        A(f"v_mov_b32 v{S+i}, -1")
    for i in range(4):
        A(f"buffer_store_dwordx4 v[{S}:{S+3}], v{vVo0}, s[24:27], s36 offen offset:{i*1024} sc1")
    Lb("L_noclean")
    A(f"buffer_load_dwordx4 v[{Q}:{Q+3}], v{vTm}, s[12:15], s35 offen")
    for b in range(NBUF):
        loadK(b); loadV(b)
    A(f"s_mov_b32 s32, {f2u(C):#x}")
    A(f"s_mov_b32 s33, {f2u(-C):#x}")
    A(f"v_mov_b32 v{vNM}, 0x7f800000")
    A(f"v_mov_b32 v{vL}, 0")
    for j in range(4):
        A(f"v_mov_b32 v{D1+j}, 0"); A(f"v_mov_b32 v{D2+j}, 0")
    for j in range(16):
        A(f"v_mov_b32 v{X+j}, 0")
    A("s_and_b32 s34, s28, 31")
    A("s_lshl_b32 s38, s34, 2")
    A("s_add_u32 s38, s38, 128")
    A("s_lshr_b32 s34, s28, 5")
    A("s_lshl_b32 s39, 1, s34")
    A("s_cmp_lg_u32 s37, 0")
    A("s_cbranch_scc1 L_noflag")
    A(f"v_mov_b32 v{vT0}, s39")
    A(f"v_mov_b32 v{vT1}, 0")
    A(f"s_waitcnt vmcnt({16*NBUF+1})")
    A("s_mov_b64 exec, 1")
    A(f"buffer_atomic_or v{vT0}, v{vT1}, s[20:23], s38 offen sc1")
    A("s_mov_b64 exec, -1")
    Lb("L_noflag")
    full = 16 * NBUF - 8
    nloop = (nblk - NBUF) // NBUF
    rem = (nblk - NBUF) % NBUF
    if stamps:
        A(f"s_waitcnt vmcnt({full})")
        stamp(1)
    order = list(range(NBUF))
    if prog:
        A(f"s_waitcnt vmcnt({full})")
        pstamp()
    for i in range(rem):
        block(order[0], full, full, True)
        order = order[1:] + order[:1]
    if nloop > 0:
        A(f"s_mov_b32 s31, {nloop}")
        Lb("L_loop")
        start = len(o)
        for b in order:
            block(b, full, full, True)
        pstamp()
        A("s_sub_u32 s31, s31, 1")
        A("s_cmp_lg_u32 s31, 0")
        A("s_cbranch_scc1 L_loop")
        assert check_seam(o[start:])
    for i, b in enumerate(order):
        left = NBUF - i
        block(b, 16 * left - 8, 16 * left - 16, False)
        pstamp()
    stamp(2)
    A(f"v_add_f32_dpp v{vL}, v{vL}, v{vL} row_ror:4 row_mask:0xf bank_mask:0xf")
    A(f"v_add_f32_dpp v{vL}, v{vL}, v{vL} row_ror:8 row_mask:0xf bank_mask:0xf")
    A(f"v_mov_b32 v{vTm}, v{vL}")
    A(f"v_permlane16_swap_b32 v{vTm}, v{vL}")
    A(f"v_add_f32 v{vL}, v{vTm}, v{vL}")
    A(f"v_mov_b32 v{vTm}, v{vL}")
    A(f"v_permlane32_swap_b32 v{vTm}, v{vL}")
    A(f"v_add_f32 v{vL}, v{vTm}, v{vL}")
    A(f"v_and_b32 v{vT0}, 15, v{vLane}")
    A(f"v_lshrrev_b32 v{vT1}, 4, v{vLane}")
    A(f"v_lshlrev_b32 v{vT0}, 5, v{vT0}")
    A(f"v_lshl_add_u32 v{vT0}, v{vT1}, 2, v{vT0}")
    A("s_lshl_b32 s34, s3, 11")
    A(f"v_add_u32 v{vT0}, s34, v{vT0}")
    A("s_lshl_b32 s34, s3, 5")
    A(f"s_add_u32 s34, s34, {W*2048}")
    A(f"v_lshlrev_b32 v{vT1}, 3, v{vT2}")
    A(f"v_add_u32 v{vT1}, s34, v{vT1}")
    for j in range(4):
        A(f"ds_write_b32 v{vT0}, v{D1+j} offset:{j*512}")
        A(f"ds_write_b32 v{vT0}, v{D2+j} offset:{j*512+16}")
    A("s_mov_b64 exec, 15")
    A(f"ds_write_b64 v{vT1}, v[{vNM}:{vNM+1}]")
    A("s_mov_b64 exec, -1")
    A("s_waitcnt lgkmcnt(0)")
    A("s_barrier")
    if W > 4:
        A("s_cmp_ge_u32 s3, 4")
        A("s_cbranch_scc1 L_end")
    O = S
    ML = S + 16
    A("s_lshl_b32 s34, s3, 9")
    A(f"v_lshlrev_b32 v{vT0}, 3, v{vLane}")
    A(f"v_add_u32 v{vT0}, s34, v{vT0}")
    A("s_lshl_b32 s34, s3, 3")
    A(f"s_add_u32 s34, s34, {W*2048}")
    A(f"v_mov_b32 v{vT1}, s34")
    for w in range(W):
        A(f"ds_read_b64 v[{ML+2*w}:{ML+2*w+1}], v{vT1} offset:{w*32}")
    for w in range(W):
        A(f"ds_read_b64 v[{O+2*w}:{O+2*w+1}], v{vT0} offset:{w*2048}")
    G = 40
    A(f"s_waitcnt lgkmcnt({W})")
    A(f"v_min_f32 v{G+2}, v{ML}, v{ML+2}")
    for w in range(2, W):
        A(f"v_min_f32 v{G+2}, v{G+2}, v{ML+2*w}")
    for w in range(W):
        A(f"v_sub_f32 v{ML+2*w}, v{G+2}, v{ML+2*w}")
    for w in range(W):
        A(f"v_exp_f32 v{ML+2*w}, v{ML+2*w}")
    A(f"v_mul_f32 v{G+3}, v{ML}, v{ML+1}")
    for w in range(1, W):
        A(f"v_fma_f32 v{G+3}, v{ML+2*w}, v{ML+2*w+1}, v{G+3}")
    A("s_waitcnt lgkmcnt(0)")
    A(f"v_mul_f32 v{G}, v{ML}, v{O}")
    A(f"v_mul_f32 v{G+1}, v{ML}, v{O+1}")
    for w in range(1, W):
        A(f"v_fma_f32 v{G}, v{ML+2*w}, v{O+2*w}, v{G}")
        A(f"v_fma_f32 v{G+1}, v{ML+2*w}, v{O+2*w+1}, v{G+1}")
    A(f"v_lshlrev_b32 v{vT0}, 4, v0")
    A("s_cmp_lg_u32 s29, 0")
    A("s_cbranch_scc1 L_consumer")
    for i in range(4):
        A(f"v_min_u32 v{G+i}, -2, v{G+i}")
    A(f"buffer_store_dwordx4 v[{G}:{G+3}], v{vT0}, s[24:27], s36 offen sc1")
    A("s_branch L_fin")
    Lb("L_consumer")
    H = 44
    A(f"v_mov_b32 v{vT1}, 0")
    A("s_mov_b32 s31, 0x400000")
    Lb("L_pollflag")
    A(f"buffer_load_dword v{H}, v{vT1}, s[20:23], s38 offen sc1")
    A("s_sub_u32 s31, s31, 1")
    A("s_cbranch_scc1 L_gotflag")
    A("s_waitcnt vmcnt(0)")
    A(f"v_and_b32 v{H}, s39, v{H}")
    A(f"v_cmp_eq_u32 vcc, 0, v{H}")
    A("s_cbranch_vccnz L_pollflag")
    Lb("L_gotflag")
    A("s_waitcnt vmcnt(0)")
    A("s_mov_b32 s31, 0x400000")
    Lb("L_poll")
    A(f"buffer_load_dwordx4 v[{H}:{H+3}], v{vT0}, s[24:27], s36 offen sc1")
    A("s_sub_u32 s31, s31, 1")
    A("s_cbranch_scc1 L_got")
    A("s_waitcnt vmcnt(0)")
    A(f"v_max3_u32 v{vT1}, v{H}, v{H+1}, v{H+2}")
    A(f"v_max_u32 v{vT1}, v{vT1}, v{H+3}")
    A(f"v_cmp_eq_u32 vcc, -1, v{vT1}")
    A("s_cbranch_vccnz L_poll")
    Lb("L_got")
    A("s_waitcnt vmcnt(0)")
    A(f"v_min_f32 v{vMx}, v{G+2}, v{H+2}")
    A(f"v_sub_f32 v{G+2}, v{vMx}, v{G+2}")
    A(f"v_sub_f32 v{H+2}, v{vMx}, v{H+2}")
    A(f"v_exp_f32 v{G+2}, v{G+2}")
    A(f"v_exp_f32 v{H+2}, v{H+2}")
    A(f"v_mul_f32 v{G+3}, v{G+2}, v{G+3}")
    A(f"v_fma_f32 v{G+3}, v{H+2}, v{H+3}, v{G+3}")
    A(f"v_rcp_f32 v{G+3}, v{G+3}")
    A(f"v_mul_f32 v{G}, v{G+2}, v{G}")
    A(f"v_mul_f32 v{G+1}, v{G+2}, v{G+1}")
    A(f"v_fma_f32 v{G}, v{H+2}, v{H}, v{G}")
    A(f"v_fma_f32 v{G+1}, v{H+2}, v{H+1}, v{G+1}")
    A(f"v_mul_f32 v{G}, v{G+3}, v{G}")
    A(f"v_mul_f32 v{G+1}, v{G+3}, v{G+1}")
    A(f"v_cvt_pk_bf16_f32 v{G}, v{G}, v{G+1}")
    A(f"v_lshlrev_b32 v{vT0}, 2, v0")
    A(f"buffer_store_dword v{G}, v{vT0}, s[16:19], s35 offen")
    Lb("L_fin")
    if prog:
        A("s_waitcnt vmcnt(0)")
        pstamp()
        A("s_cmp_lg_u32 s3, 0")
        A("s_cbranch_scc1 L_end")
        A(f"v_lshlrev_b32 v{vT1}, 2, v{vLane}")
        A("s_mov_b64 exec, 0x7fff")
        A(f"buffer_atomic_add v27, v{vT1}, s[20:23], 0 offen sc1")
        A("s_mov_b64 exec, 1")
        A(f"v_mov_b32 v27, s50")
        A(f"buffer_atomic_umax v27, v{vT1}, s[20:23], 0 offen offset:60 sc1")
    if stamps:
        A("s_waitcnt vmcnt(0)")
        stamp(3)
        A("s_waitcnt lgkmcnt(0)")
        for i in range(8):
            A(f"v_mov_b32 v{S+i}, s{40+i}")
        A(f"s_mul_i32 s34, s2, {W}")
        A("s_add_u32 s34, s34, s3")
        A("s_lshl_b32 s34, s34, 5")
        A("s_add_u32 s34, s34, 0x10000000")
        A(f"v_mov_b32 v{vT1}, 0")
        A("s_mov_b64 exec, 1")
        A(f"buffer_store_dwordx4 v[{S}:{S+3}], v{vT1}, s[24:27], s34 offen")
        A(f"buffer_store_dwordx4 v[{S+4}:{S+7}], v{vT1}, s[24:27], s34 offen offset:16")
    Lb("L_end")
    A("s_endpgm")
    body = fix_hazards(o)
    nacc = 64 * NBUF
    tail = ['.section .rodata,"a"', ".p2align 6", f".amdhsa_kernel {KN}",
            f"  .amdhsa_next_free_vgpr {NV + nacc}", "  .amdhsa_next_free_sgpr 56", f"  .amdhsa_accum_offset {NV}",
            "  .amdhsa_group_segment_fixed_size 0", "  .amdhsa_kernarg_size 48", "  .amdhsa_user_sgpr_count 2",
            "  .amdhsa_user_sgpr_kernarg_segment_ptr 1", "  .amdhsa_system_sgpr_workgroup_id_x 1", ".end_amdhsa_kernel"]
    return "\n".join(hdr + body + tail) + "\n"

if __name__ == "__main__":
    names = []
    for spec in sys.argv[1:]:
        kw = {}
        for p in spec.split(","):
            k, v = p.split("=")
            kw[k] = v.replace("_", " ") if k in ("fk", "fv") else int(v)
        fn = "k1_" + spec.replace(",", "-").replace("=", "") + ".s"
        open(fn, "w").write(gen(**kw))
        names.append(fn)
    print(" ".join(names))
```

```python
import sys, struct, math
from asmlib import fix_hazards, check_seam
KN = "standalone__gqa_softmax__sampling_kernel"

def f2u(x):
    return struct.unpack("<I", struct.pack("<f", x))[0]

def gen(NS0=14, NS1=12, fk="nt", fv="nt", stamps=0, cstride=4352, px=5, early=0, cons=0, pf=0, ps=0, NSG=0, vfirst=0, pgmap=0):
    W = 4; KEYS = 16; NBUF = 2; NL = 4
    US = (256 - NSG) // 2
    NUN = US + NSG
    POOL = 4 * (NS0 + NS1)
    full = NL * (2 * NBUF - 1)
    C = 128 ** -0.5 * math.log2(math.e)
    BIG = f2u(3.0e38)
    o = []
    A = lambda s: o.append("  " + s)
    Lb = lambda s: o.append(s + ":")
    vKo, vVo = 1, 2
    vT0, vT1, vT2 = 5, 6, 7
    Q = 8
    D1, D2 = 12, 16
    vNM, vL, vAl, vMx, vTm, vD = 20, 21, 22, 23, 24, 25
    vLane, vZero, vFlag = 26, 27, 28
    Z, P, Plo, Phi = 32, 33, 34, 35
    X = 36
    S = 44
    NV = 64
    sW, sBH, sRole = 3, 28, 29
    sU, sOff, sI, sTk, sT0, sT1 = 30, 32, 33, 35, 36, 37
    sC, sNC, sNS = 38, 39, 40
    sOff1, sSg, sSgN = 31, 34, 41
    sCnt = 42
    sDbg = 44
    sSlot, sFlagOff, sBit, sQO = 46, 47, 48, 49
    ST = 52
    bufsz = 32
    def aK(b, t): r = b * bufsz + t * 4; return f"a[{r}:{r+3}]"
    def aV(b, t, hf): r = b * bufsz + 16 + t * 4 + hf * 2; return f"a[{r}:{r+1}]"
    def aV4(b, t): r = b * bufsz + 16 + t * 4; return f"a[{r}:{r+3}]"
    def pstamp(i):
        if ps:
            A(f"s_memrealtime s[{ST+2*i}:{ST+2*i+1}]")
    def stamp(i):
        if stamps and not (ps and i):
            A(f"s_memrealtime s[{ST+2*i}:{ST+2*i+1}]")
    def loadK(b):
        for t in range(NL):
            A(f"buffer_load_dwordx4 {aK(b,t)}, v{vKo}, s[4:7], s{sOff} offen offset:{t*1024} {fk}")
    def loadV(b):
        for t in range(NL):
            A(f"buffer_load_dwordx4 {aV4(b,t)}, v{vVo}, s[8:11], s{sOff} offen offset:{t*1024} {fv}")
    def unit_off(su):
        A(f"s_and_b32 s{sT0}, s{su}, 3")
        A(f"s_andn2_b32 s{sT1}, s{su}, 3")
        A(f"s_lshl1_add_u32 s{sT0}, s{sT1}, s{sT0}")
        A(f"s_lshl_b32 s{sOff}, s{sT0}, 12")
    def ticket():
        A(f"s_add_u32 s{sT0}, s{sI}, 2")
        A(f"s_cmp_lt_u32 s{sT0}, s{sNS}")
        A("s_cbranch_scc1 L_notk")
        A(f"s_cmp_ge_u32 s{sU}, {NUN}")
        A("s_cbranch_scc1 L_notk")
        A(f"s_cmp_eq_u32 s{sT0}, s{sNS}")
        A("s_cbranch_scc1 L_chk")
        Lb("L_tk")
        A(f"s_mov_b32 s{sTk}, 1")
        A(f"s_atomic_add s{sTk}, s[{sCnt}:{sCnt+1}], 0 glc")
        Lb("L_notk")

    def step(b):
        A(f"s_waitcnt vmcnt({full})")
        for t in range(NL):
            A(f"v_mfma_f32_16x16x32_bf16 v[{S+4*t}:{S+4*t+3}], {aK(b,t)}, v[{Q}:{Q+3}], 0")
        if b == 0:
            A(f"s_add_u32 s{sT0}, s{sI}, 1")
            A(f"s_add_u32 s{sT1}, s{sU}, 4")
            A(f"s_cmp_lt_u32 s{sT0}, s{sNS}")
            A("s_waitcnt lgkmcnt(0)")
            A(f"s_cselect_b32 s{sU}, s{sT1}, s{sTk}")
            unit_off(sU)
            if NSG:
                A(f"s_add_u32 s{sOff1}, s{sOff}, 0x4000")
                A(f"s_add_u32 s{sT0}, s{sU}, {US}")
                A(f"s_lshl_b32 s{sT0}, s{sT0}, 12")
                A(f"s_cmp_ge_u32 s{sU}, {US}")
                A(f"s_cselect_b32 s{sOff}, s{sT0}, s{sOff}")
                A(f"s_cselect_b32 s{sOff1}, 0x100000, s{sOff1}")
                A(f"s_cselect_b32 s{sSgN}, 1, 0")
            A(f"s_add_u32 s{sT0}, s{sI}, 3")
            A(f"s_cmp_lg_u32 s{sT0}, s{sNS}")
            A("s_cbranch_scc1 L_nofld")
            A(f"buffer_load_dword v{vFlag}, v{vZero}, s[20:23], s{sFlagOff} offen sc1")
            Lb("L_nofld")
        elif NSG:
            A(f"s_mov_b32 s{sOff}, s{sOff1}")
        else:
            A(f"s_add_u32 s{sOff}, s{sOff}, 0x4000")
        loadK(b)
        if b == (0 if early else 1):
            ticket()
        for t in range(NL):
            r = lambda j: S + 4 * t + ((t + j) & 3)
            A(f"v_add_f32_dpp v{r(0)}, v{r(1)}, v{r(0)} row_ror:12 row_mask:0xf bank_mask:0xf")
            A(f"v_add_f32_dpp v{r(2)}, v{r(3)}, v{r(2)} row_ror:12 row_mask:0xf bank_mask:0xf")
        for t in range(4):
            r = lambda j: S + 4 * t + ((t + j) & 3)
            A(f"v_add_f32_dpp v{Z}, v{r(2)}, v{r(0)} row_ror:8 row_mask:0xf bank_mask:{1<<t:#x}")
        A(f"v_max_f32_dpp v{vMx}, v{Z}, v{Z} row_ror:4 row_mask:0xf bank_mask:0xf")
        A(f"v_max_f32_dpp v{vMx}, v{vMx}, v{vMx} row_ror:8 row_mask:0xf bank_mask:0xf")
        A(f"v_mov_b32 v{vTm}, v{vMx}")
        A(f"v_permlane16_swap_b32 v{vTm}, v{vMx}")
        A(f"v_max_f32 v{vMx}, v{vTm}, v{vMx}")
        A(f"v_mov_b32 v{vTm}, v{vMx}")
        A(f"v_permlane32_swap_b32 v{vTm}, v{vMx}")
        A(f"v_max_f32 v{vMx}, v{vTm}, v{vMx}")
        A(f"v_mul_f32 v{vMx}, s{sNC}, v{vMx}")
        A(f"v_min_f32 v{vMx}, v{vMx}, v{vNM}")
        A(f"v_sub_f32 v{vD}, v{vMx}, v{vNM}")
        A(f"v_fma_f32 v{P}, v{Z}, s{sC}, v{vMx}")
        A(f"v_exp_f32 v{vAl}, v{vD}")
        A(f"v_exp_f32 v{P}, v{P}")
        A(f"v_mov_b32 v{vNM}, v{vMx}")
        A(f"v_cvt_pk_bf16_f32 v{Plo}, v{P}, 0")
        A(f"v_cvt_pk_bf16_f32 v{Phi}, 0, v{P}")
        A(f"v_fma_f32 v{vL}, v{vL}, v{vAl}, v{P}")
        for j in range(4):
            A(f"v_mul_f32_dpp v{D1+j}, v{vAl}, v{D1+j} quad_perm:[{j},{j},{j},{j}] row_mask:0xf bank_mask:0xf")
            A(f"v_mul_f32_dpp v{D2+j}, v{vAl}, v{D2+j} quad_perm:[{j},{j},{j},{j}] row_mask:0xf bank_mask:0xf")
        for e in range(4):
            for t in range(NL):
                src = Plo if e % 2 == 0 else Phi
                dst = X + 2 * t + (e >> 1)
                rot = (4 * (e - t)) % 16
                ctl = "quad_perm:[0,1,2,3]" if rot == 0 else f"row_ror:{rot}"
                A(f"v_mov_b32_dpp v{dst}, v{src} {ctl} row_mask:0xf bank_mask:{1<<e:#x}")
        A(f"s_waitcnt vmcnt({full})")
        for t in range(NL):
            A(f"v_mfma_f32_16x16x16_bf16 v[{D1}:{D1+3}], v[{X+2*t}:{X+2*t+1}], {aV(b,t,0)}, v[{D1}:{D1+3}]")
            A(f"v_mfma_f32_16x16x16_bf16 v[{D2}:{D2+3}], v[{X+2*t}:{X+2*t+1}], {aV(b,t,1)}, v[{D2}:{D2+3}]")
        loadV(b)

    lds = W * 2048 + W * 32
    hdr = [f"; @launch grid=(256,1,1) block=(256,1,1) lds={lds}",
           '.amdgcn_target "amdgcn-amd-amdhsa--gfx950"', ".text", f".globl {KN}", ".p2align 8",
           f".type {KN},@function", f"{KN}:"]
    A("s_load_dwordx2 s[4:5], s[0:1], 8")
    A("s_load_dwordx2 s[8:9], s[0:1], 16")
    A("s_load_dwordx2 s[24:25], s[0:1], 40")
    A("s_load_dwordx2 s[12:13], s[0:1], 0")
    A("s_load_dwordx2 s[20:21], s[0:1], 32")
    A("s_load_dwordx2 s[16:17], s[0:1], 24")
    stamp(0)
    A("s_cmp_ge_u32 s2, 256")
    A("s_cbranch_scc1 L_end")
    A(f"v_lshrrev_b32 v{vT0}, 6, v0")
    A(f"v_and_b32 v{vLane}, 63, v0")
    A(f"v_readfirstlane_b32 s{sW}, v{vT0}")
    A(f"s_and_b32 s{sRole}, s2, 1")
    A(f"s_mul_i32 s{sT0}, s{sRole}, {px}")
    A(f"s_xor_b32 s{sBH}, s2, s{sT0}")
    if pgmap:
        A(f"s_and_b32 s{sT0}, s{sBH}, 6")
        A(f"s_bfe_u32 s{sT1}, s{sBH}, 0x10003")
        A(f"s_lshr_b32 s{sBH}, s{sBH}, 4")
        A(f"s_lshl3_add_u32 s{sBH}, s{sBH}, s{sT0}")
        A(f"s_add_u32 s{sBH}, s{sBH}, s{sT1}")
    else:
        A(f"s_lshr_b32 s{sBH}, s{sBH}, 1")
    A(f"v_bfe_u32 v{vT0}, v{vLane}, 2, 2")
    A(f"v_and_b32 v{vT1}, 48, v{vLane}")
    A(f"v_and_b32 v{vT2}, 3, v{vLane}")
    A(f"v_lshlrev_b32 v{vT1}, 2, v{vT1}")
    A(f"v_lshl_add_u32 v{vKo}, v{vT0}, 8, v{vT1}")
    A(f"v_lshl_add_u32 v{vKo}, v{vT2}, 4, v{vKo}")
    A(f"v_lshlrev_b32 v{vVo}, 4, v{vLane}")
    A(f"s_mul_i32 s{sU}, s{sRole}, {4*NS0}")
    A(f"s_add_u32 s{sU}, s{sU}, s{sW}")
    unit_off(sU)
    A(f"s_lshl_b32 s{sT0}, s{sBH}, 20")
    A("s_mov_b32 s6, 0x100000"); A("s_mov_b32 s7, 0x20000")
    A("s_mov_b32 s10, 0x100000"); A("s_mov_b32 s11, 0x20000")
    A(f"v_lshl_add_u32 v{vTm}, v{vT2}, 8, v{vT1}")
    A(f"v_lshl_add_u32 v{vTm}, v{vT0}, 4, v{vTm}")
    A("s_mov_b32 s14, 0x20000"); A("s_mov_b32 s15, 0x20000")
    A("s_mov_b32 s26, 0x20000000"); A("s_mov_b32 s27, 0x20000")
    A(f"s_lshl_b32 s{sQO}, s{sBH}, 10")
    A(f"s_lshl_b32 s{sSlot}, s{sBH}, 12")
    A(f"s_xor_b32 s{sNS}, s{sRole}, {1 - cons}")
    A(f"s_or_b32 s{sNS}, s{sNS}, s{sW}")
    for i in range(4):
        A(f"v_mov_b32 v{S+i}, -1")
    A(f"s_cmp_lg_u32 s{sNS}, 0")
    A("s_waitcnt lgkmcnt(0)")
    A("s_cbranch_scc1 L_noclean")
    for i in range(4):
        A(f"buffer_store_dwordx4 v[{S}:{S+3}], v{vVo}, s[24:27], s{sSlot} offen offset:{i*1024} sc1")
    Lb("L_noclean")
    pstamp(1)
    A(f"s_add_u32 s4, s4, s{sT0}"); A("s_addc_u32 s5, s5, 0")
    A(f"s_add_u32 s8, s8, s{sT0}"); A("s_addc_u32 s9, s9, 0")
    if vfirst:
        A(f"buffer_load_dwordx4 {aK(0,0)}, v{vKo}, s[4:7], s{sOff} offen {fk}")
        A(f"buffer_load_dwordx4 {aV4(0,0)}, v{vVo}, s[8:11], s{sOff} offen {fv}")
        A(f"buffer_load_dwordx4 v[{Q}:{Q+3}], v{vTm}, s[12:15], s{sQO} offen")
        for t in range(1, 4):
            A(f"buffer_load_dwordx4 {aK(0,t)}, v{vKo}, s[4:7], s{sOff} offen offset:{t*1024} {fk}")
        for t in range(1, 4):
            A(f"buffer_load_dwordx4 {aV4(0,t)}, v{vVo}, s[8:11], s{sOff} offen offset:{t*1024} {fv}")
    else:
        loadK(0)
        A(f"buffer_load_dwordx4 v[{Q}:{Q+3}], v{vTm}, s[12:15], s{sQO} offen")
        loadV(0)
    A(f"s_add_u32 s{sOff}, s{sOff}, 0x4000")
    loadK(1); loadV(1)
    pstamp(2)
    A("s_mov_b32 s18, 0x20000"); A("s_mov_b32 s19, 0x20000")
    A("s_mov_b32 s22, 256"); A("s_mov_b32 s23, 0x20000")
    A(f"s_mul_i32 s{sT0}, s{sBH}, {cstride}")
    A(f"s_add_u32 s{sT0}, s{sT0}, 0x400000")
    A(f"s_add_u32 s{sCnt}, s24, s{sT0}"); A(f"s_addc_u32 s{sCnt+1}, s25, 0")
    A(f"s_and_b32 s{sT0}, s{sBH}, 63")
    A(f"s_lshl_b32 s{sFlagOff}, s{sT0}, 2")
    A(f"s_lshr_b32 s{sT0}, s{sBH}, 6")
    A(f"s_lshl_b32 s{sBit}, 1, s{sT0}")
    A(f"v_mov_b32 v{vZero}, 0")
    A(f"s_cmp_lg_u32 s{sNS}, 0")
    A("s_cbranch_scc1 L_nosig")
    A(f"s_add_u32 s{sDbg}, s20, s{sFlagOff}"); A(f"s_addc_u32 s{sDbg+1}, s21, 0")
    A(f"s_mov_b32 s{sTk}, {POOL}")
    A(f"s_atomic_swap s{sTk}, s[{sCnt}:{sCnt+1}], 0 glc")
    A(f"s_mov_b32 s{sT0}, s{sBit}")
    A(f"s_waitcnt vmcnt({4*NL+1}) lgkmcnt(0)")
    A(f"s_atomic_or s{sT0}, s[{sDbg}:{sDbg+1}], 0")
    Lb("L_nosig")
    A(f"s_cmp_eq_u32 s{sRole}, 0")
    A(f"s_cselect_b32 s{sNS}, {NS0}, {NS1}")
    A(f"s_mov_b32 s{sC}, {f2u(C):#x}")
    A(f"s_mov_b32 s{sNC}, {f2u(-C):#x}")
    A(f"s_mov_b32 s{sI}, 0")
    A(f"s_mov_b32 s{sSg}, 0")
    A(f"v_mov_b32 v{vNM}, {BIG:#x}")
    A(f"v_mov_b32 v{vL}, 0")
    for j in range(4):
        A(f"v_mov_b32 v{D1+j}, 0"); A(f"v_mov_b32 v{D2+j}, 0")
    for j in range(2 * NL):
        A(f"v_mov_b32 v{X+j}, 0")
    if vfirst:
        A(f"s_waitcnt vmcnt({full-1})")
    if stamps:
        A(f"s_waitcnt vmcnt({full})")
        stamp(1)
        pstamp(3)
    start = len(o)
    Lb("L_iter")
    for b in range(NBUF):
        if b == 1 and NSG:
            A(f"s_cmp_lg_u32 s{sSg}, 0")
            A("s_cbranch_scc1 L_skip1")
        step(b)
    Lb("L_next")
    if NSG:
        A(f"s_mov_b32 s{sSg}, s{sSgN}")
    A(f"s_add_u32 s{sI}, s{sI}, 1")
    A(f"s_cmp_lt_u32 s{sU}, {NUN}")
    A("s_cbranch_scc1 L_iter")
    assert check_seam([l for l in o[start:]])
    stamp(2)
    A(f"v_add_f32_dpp v{vL}, v{vL}, v{vL} row_ror:4 row_mask:0xf bank_mask:0xf")
    A(f"v_and_b32 v{vT0}, 15, v{vLane}")
    A(f"v_lshrrev_b32 v{vT1}, 4, v{vLane}")
    A(f"v_add_f32_dpp v{vL}, v{vL}, v{vL} row_ror:8 row_mask:0xf bank_mask:0xf")
    A(f"v_lshlrev_b32 v{vT0}, 5, v{vT0}")
    A(f"v_lshl_add_u32 v{vT0}, v{vT1}, 2, v{vT0}")
    A(f"s_lshl_b32 s{sT0}, s{sW}, 11")
    A(f"v_mov_b32 v{vTm}, v{vL}")
    A(f"v_add_u32 v{vT0}, s{sT0}, v{vT0}")
    A(f"s_lshl_b32 s{sT0}, s{sW}, 5")
    A(f"v_permlane16_swap_b32 v{vTm}, v{vL}")
    for j in range(4):
        A(f"ds_write_b32 v{vT0}, v{D1+j} offset:{j*512}")
        A(f"ds_write_b32 v{vT0}, v{D2+j} offset:{j*512+16}")
    A(f"v_add_f32 v{vL}, v{vTm}, v{vL}")
    A(f"s_add_u32 s{sT0}, s{sT0}, {W*2048}")
    A(f"v_mov_b32 v{vTm}, v{vL}")
    A(f"v_lshlrev_b32 v{vT1}, 3, v{vT2}")
    A(f"v_add_u32 v{vT1}, s{sT0}, v{vT1}")
    A(f"v_permlane32_swap_b32 v{vTm}, v{vL}")
    A(f"v_add_f32 v{vL}, v{vTm}, v{vL}")
    A("s_mov_b64 exec, 15")
    A(f"ds_write_b64 v{vT1}, v[{vNM}:{vNM+1}]")
    A("s_mov_b64 exec, -1")
    A(f"s_lshl_b32 s{sT0}, s{sW}, 9")
    A(f"v_lshlrev_b32 v{vT0}, 3, v{vLane}")
    A(f"v_add_u32 v{vT0}, s{sT0}, v{vT0}")
    A(f"s_lshl_b32 s{sT0}, s{sW}, 3")
    A(f"s_add_u32 s{sT0}, s{sT0}, {W*2048}")
    A(f"v_mov_b32 v{vT1}, s{sT0}")
    A(f"v_lshlrev_b32 v{vT2}, 4, v0")
    H = 36
    A(f"s_cmp_lg_u32 s{sRole}, {cons}")
    A("s_cbranch_scc1 L_nopre")
    A(f"buffer_load_dwordx4 v[{H}:{H+3}], v{vT2}, s[24:27], s{sSlot} offen sc1")
    Lb("L_nopre")
    A("s_waitcnt lgkmcnt(0)")
    A("s_barrier")
    O = S; ML = S + 8
    for w in range(W):
        A(f"ds_read_b64 v[{ML+2*w}:{ML+2*w+1}], v{vT1} offset:{w*32}")
    for w in range(W):
        A(f"ds_read_b64 v[{O+2*w}:{O+2*w+1}], v{vT0} offset:{w*2048}")
    G = 40
    A(f"s_waitcnt lgkmcnt({W})")
    A(f"v_min_f32 v{G+2}, v{ML}, v{ML+2}")
    A(f"v_min3_f32 v{G+2}, v{G+2}, v{ML+4}, v{ML+6}")
    for w in range(W): A(f"v_sub_f32 v{ML+2*w}, v{G+2}, v{ML+2*w}")
    for w in range(W): A(f"v_exp_f32 v{ML+2*w}, v{ML+2*w}")
    A(f"v_mul_f32 v{G+3}, v{ML}, v{ML+1}")
    for w in range(1, W): A(f"v_fma_f32 v{G+3}, v{ML+2*w}, v{ML+2*w+1}, v{G+3}")
    A("s_waitcnt lgkmcnt(0)")
    A(f"v_mul_f32 v{G}, v{ML}, v{O}")
    A(f"v_mul_f32 v{G+1}, v{ML}, v{O+1}")
    for w in range(1, W):
        A(f"v_fma_f32 v{G}, v{ML+2*w}, v{O+2*w}, v{G}")
        A(f"v_fma_f32 v{G+1}, v{ML+2*w}, v{O+2*w+1}, v{G+1}")
    A(f"s_cmp_eq_u32 s{sRole}, {cons}")
    A("s_cbranch_scc1 L_consumer")
    for i in range(4):
        A(f"v_min_u32 v{G+i}, -2, v{G+i}")
    A(f"buffer_store_dwordx4 v[{G}:{G+3}], v{vT2}, s[24:27], s{sSlot} offen sc1")
    A("s_branch L_fin")
    if NSG:
        Lb("L_skip1")
        A(f"s_mov_b32 s{sOff}, s{sOff1}")
        A(f"s_cmp_ge_u32 s{sU}, {NUN}")
        A("s_cbranch_scc1 L_skip2")
        A(f"s_mov_b32 s{sTk}, 1")
        A(f"s_atomic_add s{sTk}, s[{sCnt}:{sCnt+1}], 0 glc")
        Lb("L_skip2")
        loadK(1); loadV(1)
        A("s_branch L_next")
    Lb("L_chk")
    A(f"s_mov_b32 s{sT1}, 0x100000")
    Lb("L_chk1")
    A(f"v_readfirstlane_b32 s{sT0}, v{vFlag}")
    A(f"s_and_b32 s{sT0}, s{sT0}, s{sBit}")
    A("s_cbranch_scc1 L_tk")
    A(f"s_sub_u32 s{sT1}, s{sT1}, 1")
    A("s_cbranch_scc1 L_tk")
    A("s_sleep 8")
    A(f"buffer_load_dword v{vFlag}, v{vZero}, s[20:23], s{sFlagOff} offen sc1")
    A("s_waitcnt vmcnt(0)")
    A("s_branch L_chk1")
    Lb("L_poll")
    A(f"buffer_load_dwordx4 v[{H}:{H+3}], v{vT2}, s[24:27], s{sSlot} offen sc1")
    Lb("L_consumer")
    A(f"s_sub_u32 s{sI}, s{sI}, 0x1000")
    A("s_waitcnt vmcnt(0)")
    A(f"v_max3_u32 v{vT1}, v{H}, v{H+1}, v{H+2}")
    A(f"v_max_u32 v{vT1}, v{vT1}, v{H+3}")
    A(f"s_cmp_lt_u32 s{sI}, 0x1000")
    A("s_cbranch_scc1 L_got")
    A(f"v_cmp_eq_u32 vcc, -1, v{vT1}")
    A("s_cbranch_vccnz L_poll")
    Lb("L_got")
    A(f"v_min_f32 v{vMx}, v{G+2}, v{H+2}")
    A(f"v_sub_f32 v{G+2}, v{vMx}, v{G+2}")
    A(f"v_sub_f32 v{H+2}, v{vMx}, v{H+2}")
    A(f"v_exp_f32 v{G+2}, v{G+2}")
    A(f"v_exp_f32 v{H+2}, v{H+2}")
    A(f"v_lshlrev_b32 v{vT0}, 2, v0")
    A(f"v_mul_f32 v{G+3}, v{G+2}, v{G+3}")
    A(f"v_fma_f32 v{G+3}, v{H+2}, v{H+3}, v{G+3}")
    A(f"v_rcp_f32 v{G+3}, v{G+3}")
    A(f"v_mul_f32 v{G}, v{G+2}, v{G}")
    A(f"v_mul_f32 v{G+1}, v{G+2}, v{G+1}")
    A(f"v_fma_f32 v{G}, v{H+2}, v{H}, v{G}")
    A(f"v_fma_f32 v{G+1}, v{H+2}, v{H+1}, v{G+1}")
    A(f"v_mul_f32 v{G}, v{G+3}, v{G}")
    A(f"v_mul_f32 v{G+1}, v{G+3}, v{G+1}")
    A(f"v_cvt_pk_bf16_f32 v{G}, v{G}, v{G+1}")
    A(f"buffer_store_dword v{G}, v{vT0}, s[16:19], s{sQO} offen")
    Lb("L_fin")
    if stamps:
        A("s_waitcnt vmcnt(0)")
        stamp(3)
        A("s_waitcnt lgkmcnt(0)")
        for i in range(8):
            A(f"v_mov_b32 v{S+i}, s{ST+i}")
        A(f"v_mov_b32 v{S+1}, s{sI}")
        A(f"s_lshl_b32 s{sT0}, s2, 2")
        A(f"s_add_u32 s{sT0}, s{sT0}, s{sW}")
        A(f"s_lshl_b32 s{sT0}, s{sT0}, 5")
        A(f"s_add_u32 s{sT0}, s{sT0}, 0x10000000")
        A("s_mov_b64 exec, 1")
        A(f"buffer_store_dwordx4 v[{S}:{S+3}], v{vZero}, s[24:27], s{sT0} offen")
        A(f"buffer_store_dwordx4 v[{S+4}:{S+7}], v{vZero}, s[24:27], s{sT0} offen offset:16")
    Lb("L_end")
    A("s_endpgm")
    body = fix_hazards(o)
    tail = ['.section .rodata,"a"', ".p2align 6", f".amdhsa_kernel {KN}",
            f"  .amdhsa_next_free_vgpr {NV + 64}", "  .amdhsa_next_free_sgpr 64", f"  .amdhsa_accum_offset {NV}",
            "  .amdhsa_group_segment_fixed_size 0", "  .amdhsa_kernarg_size 48", "  .amdhsa_user_sgpr_count 2",
            "  .amdhsa_user_sgpr_kernarg_segment_ptr 1", "  .amdhsa_system_sgpr_workgroup_id_x 1", ".end_amdhsa_kernel"]
    return "\n".join(hdr + body + tail) + "\n"

if __name__ == "__main__":
    names = []
    for spec in sys.argv[1:]:
        kw = {}
        for p in spec.split(","):
            k, v = p.split("=")
            kw[k] = v.replace("_", " ") if k in ("fk", "fv") else int(v)
        fn = "k4_" + spec.replace(",", "-").replace("=", "") + ".s"
        open(fn, "w").write(gen(**kw))
        names.append(fn)
    print(" ".join(names))
```

```python
import sys, struct, math
from asmlib import fix_hazards, check_seam
KN = "standalone__gqa_softmax__sampling_kernel"

def f2u(x):
    return struct.unpack("<I", struct.pack("<f", x))[0]

def gen(NS0=14, NS1=12, fk="nt", fv="nt", stamps=0, cstride=4352, px=5, early=0, cons=0, pf=0, ps=0, NSG=0, vfirst=0, pgmap=0, thr=0, TH=4, denorm=1, M=0, lin=0, nocomp=0, noproto=0, klate=0, qlast=0, alt=0, fo=""):
    W = 4; KEYS = 16; NBUF = 2; NL = 4
    US = (256 - NSG) // 2
    NUN = US + NSG
    POOL = 4 * (NS0 + NS1)
    full = NL * (2 * NBUF - 1)
    C = 128 ** -0.5 * math.log2(math.e)
    BIG = f2u(3.0e38)
    o = []
    A = lambda s: o.append("  " + s)
    Lb = lambda s: o.append(s + ":")
    vKo, vVo = 1, 2
    vT0, vT1, vT2 = 5, 6, 7
    Q = 8
    D1, D2 = 12, 16
    vNM, vL, vAl, vMx, vTm, vD = 20, 21, 22, 23, 24, 25
    vLane, vZero, vFlag = 26, 27, 28
    Z, P, Plo, Phi = 32, 33, 34, 35
    X = 36
    S = 44
    NV = 64
    sW, sBH, sRole = 3, 28, 29
    sU, sOff, sI, sTk, sT0, sT1 = 30, 32, 33, 35, 36, 37
    sC, sNC, sNS = 38, 39, 40
    sOff1, sSg, sSgN = 31, 34, 41
    sSib = 60
    sCnt = 42
    sDbg = 44
    sSlot, sFlagOff, sBit, sQO = 46, 47, 48, 49
    ST = 52
    bufsz = 32
    def aK(b, t): r = b * bufsz + t * 4; return f"a[{r}:{r+3}]"
    def aV(b, t, hf): r = b * bufsz + 16 + t * 4 + hf * 2; return f"a[{r}:{r+1}]"
    def aV4(b, t): r = b * bufsz + 16 + t * 4; return f"a[{r}:{r+3}]"
    def pstamp(i):
        if ps:
            A(f"s_memrealtime s[{ST+2*i}:{ST+2*i+1}]")
    def stamp(i):
        if stamps and not (ps and i):
            A(f"s_memrealtime s[{ST+2*i}:{ST+2*i+1}]")
    def loadK(b):
        for t in range(NL):
            A(f"buffer_load_dwordx4 {aK(b,t)}, v{vKo}, s[4:7], s{sOff} offen offset:{t*1024} {fk}")
    def loadV(b):
        for t in range(NL):
            A(f"buffer_load_dwordx4 {aV4(b,t)}, v{vVo}, s[8:11], s{sOff} offen offset:{t*1024} {fv}")
    def unit_off(su):
        A(f"s_and_b32 s{sT0}, s{su}, 3")
        A(f"s_andn2_b32 s{sT1}, s{su}, 3")
        A(f"s_lshl1_add_u32 s{sT0}, s{sT1}, s{sT0}")
        A(f"s_lshl_b32 s{sOff}, s{sT0}, 12")
    def ticket():
        A(f"s_add_u32 s{sT0}, s{sI}, 2")
        A(f"s_cmp_lt_u32 s{sT0}, s{sNS}")
        A("s_cbranch_scc1 L_notk")
        if M:
            A(f"s_mov_b32 s{sTk}, 0x1000")
            A(f"s_cmp_ge_u32 s{sU}, s67")
        else:
            A(f"s_cmp_ge_u32 s{sU}, {NUN}")
        A("s_cbranch_scc1 L_notk")
        A(f"s_cmp_eq_u32 s{sT0}, s{sNS}")
        A("s_cbranch_scc1 L_chk")
        Lb("L_tk")
        A(f"s_mov_b32 s{sTk}, 1")
        A(f"s_atomic_add s{sTk}, s[{sCnt}:{sCnt+1}], 0 glc")
        if thr:
            for k in range(4):
                A(f"s_load_dword s{sSib+k}, s[64:65], {k*cstride} glc")
        Lb("L_notk")

    def step(b):
        n0 = len(o)
        step_(b)
        if nocomp:
            o[n0:] = [l for l in o[n0:] if not l.strip().startswith("v_")]
    def step_(b):
        A(f"s_waitcnt vmcnt({full})")
        for t in range(NL):
            A(f"v_mfma_f32_16x16x32_bf16 v[{S+4*t}:{S+4*t+3}], {aK(b,t)}, v[{Q}:{Q+3}], 0")
        if b == 0:
            A(f"s_add_u32 s{sT0}, s{sI}, 1")
            A(f"s_add_u32 s{sT1}, s{sU}, 4")
            A(f"s_cmp_lt_u32 s{sT0}, s{sNS}")
            A("s_waitcnt lgkmcnt(0)")
            A(f"s_cselect_b32 s{sU}, s{sT1}, s{sTk}")
            if thr:
                A(f"s_cselect_b32 s66, 0, s{sTk}")
                A(f"s_min_u32 s{sT0}, s{sSib}, s{sSib+1}")
                A(f"s_min_u32 s{sT1}, s{sSib+2}, s{sSib+3}")
                A(f"s_min_u32 s{sT0}, s{sT0}, s{sT1}")
                A(f"s_add_u32 s{sT0}, s{sT0}, {thr}")
                A(f"s_cmp_gt_u32 s66, s{sT0}")
                A(f"s_cselect_b32 s66, 1, 0")
            unit_off(sU)
            if NSG:
                A(f"s_add_u32 s{sOff1}, s{sOff}, 0x4000")
                A(f"s_add_u32 s{sT0}, s{sU}, {US}")
                A(f"s_lshl_b32 s{sT0}, s{sT0}, 12")
                A(f"s_cmp_ge_u32 s{sU}, {US}")
                A(f"s_cselect_b32 s{sOff}, s{sT0}, s{sOff}")
                A(f"s_cselect_b32 s{sOff1}, 0x100000, s{sOff1}")
                A(f"s_cselect_b32 s{sSgN}, 1, 0")
            A(f"s_add_u32 s{sT0}, s{sI}, 3")
            A(f"s_cmp_lg_u32 s{sT0}, s{sNS}")
            A("s_cbranch_scc1 L_nofld")
            A(f"buffer_load_dword v{vFlag}, v{vZero}, s[20:23], s{sFlagOff} offen sc1")
            Lb("L_nofld")
        elif NSG:
            A(f"s_mov_b32 s{sOff}, s{sOff1}")
        else:
            A(f"s_add_u32 s{sOff}, s{sOff}, 0x4000")
        if thr:
            A("s_cmp_eq_u32 s66, 0")
            A(f"s_cbranch_scc1 L_noth{b}")
            A(f"s_waitcnt vmcnt({TH})")
            Lb(f"L_noth{b}")
        loadK(b)
        if b == (0 if early else 1):
            ticket()
        for t in range(NL):
            r = lambda j: S + 4 * t + ((t + j) & 3)
            A(f"v_add_f32_dpp v{r(0)}, v{r(1)}, v{r(0)} row_ror:12 row_mask:0xf bank_mask:0xf")
            A(f"v_add_f32_dpp v{r(2)}, v{r(3)}, v{r(2)} row_ror:12 row_mask:0xf bank_mask:0xf")
        for t in range(4):
            r = lambda j: S + 4 * t + ((t + j) & 3)
            A(f"v_add_f32_dpp v{Z}, v{r(2)}, v{r(0)} row_ror:8 row_mask:0xf bank_mask:{1<<t:#x}")
        A(f"v_max_f32_dpp v{vMx}, v{Z}, v{Z} row_ror:4 row_mask:0xf bank_mask:0xf")
        A(f"v_max_f32_dpp v{vMx}, v{vMx}, v{vMx} row_ror:8 row_mask:0xf bank_mask:0xf")
        A(f"v_mov_b32 v{vTm}, v{vMx}")
        A(f"v_permlane16_swap_b32 v{vTm}, v{vMx}")
        A(f"v_max_f32 v{vMx}, v{vTm}, v{vMx}")
        A(f"v_mov_b32 v{vTm}, v{vMx}")
        A(f"v_permlane32_swap_b32 v{vTm}, v{vMx}")
        A(f"v_max_f32 v{vMx}, v{vTm}, v{vMx}")
        A(f"v_mul_f32 v{vMx}, s{sNC}, v{vMx}")
        A(f"v_min_f32 v{vMx}, v{vMx}, v{vNM}")
        A(f"v_sub_f32 v{vD}, v{vMx}, v{vNM}")
        A(f"v_fma_f32 v{P}, v{Z}, s{sC}, v{vMx}")
        A(f"v_exp_f32 v{vAl}, v{vD}")
        A(f"v_exp_f32 v{P}, v{P}")
        A(f"v_mov_b32 v{vNM}, v{vMx}")
        A(f"v_cvt_pk_bf16_f32 v{Plo}, v{P}, 0")
        A(f"v_cvt_pk_bf16_f32 v{Phi}, 0, v{P}")
        A(f"v_fma_f32 v{vL}, v{vL}, v{vAl}, v{P}")
        for j in range(4):
            A(f"v_mul_f32_dpp v{D1+j}, v{vAl}, v{D1+j} quad_perm:[{j},{j},{j},{j}] row_mask:0xf bank_mask:0xf")
            A(f"v_mul_f32_dpp v{D2+j}, v{vAl}, v{D2+j} quad_perm:[{j},{j},{j},{j}] row_mask:0xf bank_mask:0xf")
        for e in range(4):
            for t in range(NL):
                src = Plo if e % 2 == 0 else Phi
                dst = X + 2 * t + (e >> 1)
                rot = (4 * (e - t)) % 16
                ctl = "quad_perm:[0,1,2,3]" if rot == 0 else f"row_ror:{rot}"
                A(f"v_mov_b32_dpp v{dst}, v{src} {ctl} row_mask:0xf bank_mask:{1<<e:#x}")
        A(f"s_waitcnt vmcnt({full})")
        for t in range(NL):
            A(f"v_mfma_f32_16x16x16_bf16 v[{D1}:{D1+3}], v[{X+2*t}:{X+2*t+1}], {aV(b,t,0)}, v[{D1}:{D1+3}]")
            A(f"v_mfma_f32_16x16x16_bf16 v[{D2}:{D2+3}], v[{X+2*t}:{X+2*t+1}], {aV(b,t,1)}, v[{D2}:{D2+3}]")
        loadV(b)

    lds = W * 2048 + W * 32
    hdr = [f"; @launch grid=(256,1,1) block=(256,1,1) lds={lds}",
           '.amdgcn_target "amdgcn-amd-amdhsa--gfx950"', ".text", f".globl {KN}", ".p2align 8",
           f".type {KN},@function", f"{KN}:"]
    A("s_load_dwordx2 s[4:5], s[0:1], 8")
    A("s_load_dwordx2 s[8:9], s[0:1], 16")
    A("s_load_dwordx2 s[24:25], s[0:1], 40")
    A("s_load_dwordx2 s[12:13], s[0:1], 0")
    A("s_load_dwordx2 s[20:21], s[0:1], 32")
    A("s_load_dwordx2 s[16:17], s[0:1], 24")
    stamp(0)
    A("s_cmp_ge_u32 s2, 256")
    A("s_cbranch_scc1 L_end")
    A(f"v_lshrrev_b32 v{vT0}, 6, v0")
    A(f"v_and_b32 v{vLane}, 63, v0")
    A(f"v_readfirstlane_b32 s{sW}, v{vT0}")
    A(f"s_and_b32 s{sRole}, s2, 1")
    A(f"s_mul_i32 s{sT0}, s{sRole}, {px}")
    A(f"s_xor_b32 s{sBH}, s2, s{sT0}")
    if pgmap:
        A(f"s_and_b32 s{sT0}, s{sBH}, 6")
        A(f"s_bfe_u32 s{sT1}, s{sBH}, 0x10003")
        A(f"s_lshr_b32 s{sBH}, s{sBH}, 4")
        A(f"s_lshl3_add_u32 s{sBH}, s{sBH}, s{sT0}")
        A(f"s_add_u32 s{sBH}, s{sBH}, s{sT1}")
    else:
        A(f"s_lshr_b32 s{sBH}, s{sBH}, 1")
    A(f"v_bfe_u32 v{vT0}, v{vLane}, 2, 2")
    A(f"v_and_b32 v{vT1}, 48, v{vLane}")
    A(f"v_and_b32 v{vT2}, 3, v{vLane}")
    A(f"v_lshlrev_b32 v{vT1}, 2, v{vT1}")
    A(f"v_lshl_add_u32 v{vKo}, v{vT0}, 8, v{vT1}")
    A(f"v_lshl_add_u32 v{vKo}, v{vT2}, 4, v{vKo}")
    A(f"v_lshlrev_b32 v{vVo}, 4, v{vLane}")
    if lin:
        A(f"v_mov_b32 v{vKo}, v{vVo}")
    A(f"s_mul_i32 s{sU}, s{sRole}, {4*NS0}")
    A(f"s_add_u32 s{sU}, s{sU}, s{sW}")
    unit_off(sU)
    A(f"s_lshl_b32 s{sT0}, s{sBH}, 20")
    A("s_mov_b32 s6, 0x100000"); A("s_mov_b32 s7, 0x20000")
    A("s_mov_b32 s10, 0x100000"); A("s_mov_b32 s11, 0x20000")
    A(f"v_lshl_add_u32 v{vTm}, v{vT2}, 8, v{vT1}")
    A(f"v_lshl_add_u32 v{vTm}, v{vT0}, 4, v{vTm}")
    A("s_mov_b32 s14, 0x20000"); A("s_mov_b32 s15, 0x20000")
    A("s_mov_b32 s26, 0x20000000"); A("s_mov_b32 s27, 0x20000")
    A(f"s_lshl_b32 s{sQO}, s{sBH}, 10")
    A(f"s_lshl_b32 s{sSlot}, s{sBH}, 12")
    A(f"s_xor_b32 s{sNS}, s{sRole}, {1 - cons}")
    A(f"s_or_b32 s{sNS}, s{sNS}, s{sW}")
    if noproto:
        A(f"s_mov_b32 s{sNS}, 1")
    if qlast:
        if alt:
            A(f"s_bitcmp1_b32 s2, {alt}")
        A("s_waitcnt lgkmcnt(0)")
        pstamp(1)
        if alt:
            A("s_cbranch_scc1 L_vk")
        A(f"s_add_u32 s4, s4, s{sT0}"); A("s_addc_u32 s5, s5, 0")
        loadK(0)
        A(f"s_add_u32 s8, s8, s{sT0}"); A("s_addc_u32 s9, s9, 0")
        loadV(0)
        if alt:
            A("s_branch L_kv")
            Lb("L_vk")
            A(f"s_add_u32 s8, s8, s{sT0}"); A("s_addc_u32 s9, s9, 0")
            loadV(0)
            A(f"s_add_u32 s4, s4, s{sT0}"); A("s_addc_u32 s5, s5, 0")
            loadK(0)
            Lb("L_kv")
        A(f"s_add_u32 s{sOff}, s{sOff}, 0x4000")
        loadK(1); loadV(1)
        A(f"buffer_load_dwordx4 v[{Q}:{Q+3}], v{vTm}, s[12:15], s{sQO} offen")
        pstamp(2)
        for i in range(4):
            A(f"v_mov_b32 v{S+i}, -1")
        A(f"s_cmp_lg_u32 s{sNS}, 0")
        A("s_cbranch_scc1 L_noclean")
        for i in range(4):
            A(f"buffer_store_dwordx4 v[{S}:{S+3}], v{vVo}, s[24:27], s{sSlot} offen offset:{i*1024} sc1")
        Lb("L_noclean")
    else:
        for i in range(4):
            A(f"v_mov_b32 v{S+i}, -1")
        A(f"s_cmp_lg_u32 s{sNS}, 0")
        A("s_waitcnt lgkmcnt(0)")
        A("s_cbranch_scc1 L_noclean")
        for i in range(4):
            A(f"buffer_store_dwordx4 v[{S}:{S+3}], v{vVo}, s[24:27], s{sSlot} offen offset:{i*1024} sc1")
        Lb("L_noclean")
        pstamp(1)
        A(f"s_add_u32 s4, s4, s{sT0}"); A("s_addc_u32 s5, s5, 0")
        A(f"s_add_u32 s8, s8, s{sT0}"); A("s_addc_u32 s9, s9, 0")
        if vfirst:
            A(f"buffer_load_dwordx4 {aK(0,0)}, v{vKo}, s[4:7], s{sOff} offen {fk}")
            A(f"buffer_load_dwordx4 {aV4(0,0)}, v{vVo}, s[8:11], s{sOff} offen {fv}")
            A(f"buffer_load_dwordx4 v[{Q}:{Q+3}], v{vTm}, s[12:15], s{sQO} offen")
            for t in range(1, 4):
                A(f"buffer_load_dwordx4 {aK(0,t)}, v{vKo}, s[4:7], s{sOff} offen offset:{t*1024} {fk}")
            for t in range(1, 4):
                A(f"buffer_load_dwordx4 {aV4(0,t)}, v{vVo}, s[8:11], s{sOff} offen offset:{t*1024} {fv}")
        else:
            loadK(0)
            A(f"buffer_load_dwordx4 v[{Q}:{Q+3}], v{vTm}, s[12:15], s{sQO} offen")
            loadV(0)
        A(f"s_add_u32 s{sOff}, s{sOff}, 0x4000")
        loadK(1); loadV(1)
        pstamp(2)
    A("s_mov_b32 s18, 0x20000"); A("s_mov_b32 s19, 0x20000")
    A("s_mov_b32 s22, 256"); A("s_mov_b32 s23, 0x20000")
    A(f"s_mul_i32 s{sT0}, s{sBH}, {cstride}")
    A(f"s_add_u32 s{sT0}, s{sT0}, 0x400000")
    A(f"s_add_u32 s{sCnt}, s24, s{sT0}"); A(f"s_addc_u32 s{sCnt+1}, s25, 0")
    if thr:
        A(f"s_andn2_b32 s{sT0}, s{sBH}, 3")
        A(f"s_mul_i32 s{sT0}, s{sT0}, {cstride}")
        A(f"s_add_u32 s{sT0}, s{sT0}, 0x400000")
        A(f"s_add_u32 s64, s24, s{sT0}"); A("s_addc_u32 s65, s25, 0")
        for k in range(4):
            A(f"s_mov_b32 s{sSib+k}, 0")
    A(f"s_and_b32 s{sT0}, s{sBH}, 63")
    A(f"s_lshl_b32 s{sFlagOff}, s{sT0}, 2")
    A(f"s_lshr_b32 s{sT0}, s{sBH}, 6")
    A(f"s_lshl_b32 s{sBit}, 1, s{sT0}")
    A(f"v_mov_b32 v{vZero}, 0")
    A(f"s_cmp_lg_u32 s{sNS}, 0")
    A("s_cbranch_scc1 L_nosig")
    A(f"s_add_u32 s{sDbg}, s20, s{sFlagOff}"); A(f"s_addc_u32 s{sDbg+1}, s21, 0")
    A(f"s_mov_b32 s{sTk}, {POOL}")
    A(f"s_atomic_swap s{sTk}, s[{sCnt}:{sCnt+1}], 0 glc")
    A(f"s_mov_b32 s{sT0}, s{sBit}")
    A(f"s_waitcnt vmcnt({0 if qlast else 4*NL+1}) lgkmcnt(0)")
    A(f"s_atomic_or s{sT0}, s[{sDbg}:{sDbg+1}], 0")
    Lb("L_nosig")
    A(f"s_cmp_eq_u32 s{sRole}, 0")
    A(f"s_cselect_b32 s{sNS}, {NS0}, {NS1}")
    if M:
        A(f"s_cmp_eq_u32 s{sRole}, {cons}")
        A(f"s_cselect_b32 s67, 0, {M}")
        A(f"s_sub_u32 s67, {NUN}, s67")
    A(f"s_mov_b32 s{sC}, {f2u(C):#x}")
    A(f"s_mov_b32 s{sNC}, {f2u(-C):#x}")
    A(f"s_mov_b32 s{sI}, 0")
    A(f"s_mov_b32 s{sSg}, 0")
    A(f"v_mov_b32 v{vNM}, {BIG:#x}")
    A(f"v_mov_b32 v{vL}, 0")
    for j in range(4):
        A(f"v_mov_b32 v{D1+j}, 0"); A(f"v_mov_b32 v{D2+j}, 0")
    for j in range(2 * NL):
        A(f"v_mov_b32 v{X+j}, 0")
    if qlast:
        A("s_waitcnt vmcnt(0)")
    if vfirst:
        A(f"s_waitcnt vmcnt({full-1})")
    if stamps:
        A(f"s_waitcnt vmcnt({full})")
        stamp(1)
        pstamp(3)
    start = len(o)
    Lb("L_iter")
    for b in range(NBUF):
        if b == 1 and NSG:
            A(f"s_cmp_lg_u32 s{sSg}, 0")
            A("s_cbranch_scc1 L_skip1")
        step(b)
    Lb("L_next")
    if NSG:
        A(f"s_mov_b32 s{sSg}, s{sSgN}")
    A(f"s_add_u32 s{sI}, s{sI}, 1")
    A(f"s_cmp_lt_u32 s{sU}, {NUN}")
    A("s_cbranch_scc1 L_iter")
    assert check_seam([l for l in o[start:]])
    stamp(2)
    A(f"v_add_f32_dpp v{vL}, v{vL}, v{vL} row_ror:4 row_mask:0xf bank_mask:0xf")
    A(f"v_and_b32 v{vT0}, 15, v{vLane}")
    A(f"v_lshrrev_b32 v{vT1}, 4, v{vLane}")
    A(f"v_add_f32_dpp v{vL}, v{vL}, v{vL} row_ror:8 row_mask:0xf bank_mask:0xf")
    A(f"v_lshlrev_b32 v{vT0}, 5, v{vT0}")
    A(f"v_lshl_add_u32 v{vT0}, v{vT1}, 2, v{vT0}")
    A(f"s_lshl_b32 s{sT0}, s{sW}, 11")
    A(f"v_mov_b32 v{vTm}, v{vL}")
    A(f"v_add_u32 v{vT0}, s{sT0}, v{vT0}")
    A(f"s_lshl_b32 s{sT0}, s{sW}, 5")
    A(f"v_permlane16_swap_b32 v{vTm}, v{vL}")
    for j in range(4):
        A(f"ds_write_b32 v{vT0}, v{D1+j} offset:{j*512}")
        A(f"ds_write_b32 v{vT0}, v{D2+j} offset:{j*512+16}")
    A(f"v_add_f32 v{vL}, v{vTm}, v{vL}")
    A(f"s_add_u32 s{sT0}, s{sT0}, {W*2048}")
    A(f"v_mov_b32 v{vTm}, v{vL}")
    A(f"v_lshlrev_b32 v{vT1}, 3, v{vT2}")
    A(f"v_add_u32 v{vT1}, s{sT0}, v{vT1}")
    A(f"v_permlane32_swap_b32 v{vTm}, v{vL}")
    A(f"v_add_f32 v{vL}, v{vTm}, v{vL}")
    A("s_mov_b64 exec, 15")
    A(f"ds_write_b64 v{vT1}, v[{vNM}:{vNM+1}]")
    A("s_mov_b64 exec, -1")
    A(f"s_lshl_b32 s{sT0}, s{sW}, 9")
    A(f"v_lshlrev_b32 v{vT0}, 3, v{vLane}")
    A(f"v_add_u32 v{vT0}, s{sT0}, v{vT0}")
    A(f"s_lshl_b32 s{sT0}, s{sW}, 3")
    A(f"s_add_u32 s{sT0}, s{sT0}, {W*2048}")
    A(f"v_mov_b32 v{vT1}, s{sT0}")
    A(f"v_lshlrev_b32 v{vT2}, 4, v0")
    H = 36
    A(f"s_cmp_lg_u32 s{sRole}, {cons}")
    A("s_cbranch_scc1 L_nopre")
    A(f"buffer_load_dwordx4 v[{H}:{H+3}], v{vT2}, s[24:27], s{sSlot} offen sc1")
    Lb("L_nopre")
    A("s_waitcnt lgkmcnt(0)")
    A("s_barrier")
    O = S; ML = S + 8
    for w in range(W):
        A(f"ds_read_b64 v[{ML+2*w}:{ML+2*w+1}], v{vT1} offset:{w*32}")
    for w in range(W):
        A(f"ds_read_b64 v[{O+2*w}:{O+2*w+1}], v{vT0} offset:{w*2048}")
    G = 40
    A(f"s_waitcnt lgkmcnt({W})")
    A(f"v_min_f32 v{G+2}, v{ML}, v{ML+2}")
    A(f"v_min3_f32 v{G+2}, v{G+2}, v{ML+4}, v{ML+6}")
    for w in range(W): A(f"v_sub_f32 v{ML+2*w}, v{G+2}, v{ML+2*w}")
    for w in range(W): A(f"v_exp_f32 v{ML+2*w}, v{ML+2*w}")
    A(f"v_mul_f32 v{G+3}, v{ML}, v{ML+1}")
    for w in range(1, W): A(f"v_fma_f32 v{G+3}, v{ML+2*w}, v{ML+2*w+1}, v{G+3}")
    A("s_waitcnt lgkmcnt(0)")
    A(f"v_mul_f32 v{G}, v{ML}, v{O}")
    A(f"v_mul_f32 v{G+1}, v{ML}, v{O+1}")
    for w in range(1, W):
        A(f"v_fma_f32 v{G}, v{ML+2*w}, v{O+2*w}, v{G}")
        A(f"v_fma_f32 v{G+1}, v{ML+2*w}, v{O+2*w+1}, v{G+1}")
    A(f"s_cmp_eq_u32 s{sRole}, {cons}")
    A("s_cbranch_scc1 L_consumer")
    for i in range(4):
        A(f"v_min_u32 v{G+i}, -2, v{G+i}")
    A(f"buffer_store_dwordx4 v[{G}:{G+3}], v{vT2}, s[24:27], s{sSlot} offen sc1")
    A("s_branch L_fin")
    if NSG:
        Lb("L_skip1")
        A(f"s_mov_b32 s{sOff}, s{sOff1}")
        A(f"s_cmp_ge_u32 s{sU}, {NUN}")
        A("s_cbranch_scc1 L_skip2")
        A(f"s_mov_b32 s{sTk}, 1")
        A(f"s_atomic_add s{sTk}, s[{sCnt}:{sCnt+1}], 0 glc")
        Lb("L_skip2")
        loadK(1); loadV(1)
        A("s_branch L_next")
    Lb("L_chk")
    A(f"s_mov_b32 s{sT1}, 0x100000")
    Lb("L_chk1")
    A(f"v_readfirstlane_b32 s{sT0}, v{vFlag}")
    A(f"s_and_b32 s{sT0}, s{sT0}, s{sBit}")
    if noproto:
        A(f"s_mov_b32 s{sTk}, 0x1000")
        A("s_branch L_notk")
    A("s_cbranch_scc1 L_tk")
    A(f"s_sub_u32 s{sT1}, s{sT1}, 1")
    A("s_cbranch_scc1 L_tk")
    A("s_sleep 8")
    A(f"buffer_load_dword v{vFlag}, v{vZero}, s[20:23], s{sFlagOff} offen sc1")
    A("s_waitcnt vmcnt(0)")
    A("s_branch L_chk1")
    Lb("L_poll")
    A(f"buffer_load_dwordx4 v[{H}:{H+3}], v{vT2}, s[24:27], s{sSlot} offen sc1")
    Lb("L_consumer")
    A(f"s_sub_u32 s{sI}, s{sI}, 0x1000")
    A("s_waitcnt vmcnt(0)")
    A(f"v_max3_u32 v{vT1}, v{H}, v{H+1}, v{H+2}")
    A(f"v_max_u32 v{vT1}, v{vT1}, v{H+3}")
    A(f"s_cmp_lt_u32 s{sI}, 0x1000")
    A("s_cbranch_scc1 L_got")
    if not noproto:
        A(f"v_cmp_eq_u32 vcc, -1, v{vT1}")
        A("s_cbranch_vccnz L_poll")
    Lb("L_got")
    A(f"v_min_f32 v{vMx}, v{G+2}, v{H+2}")
    A(f"v_sub_f32 v{G+2}, v{vMx}, v{G+2}")
    A(f"v_sub_f32 v{H+2}, v{vMx}, v{H+2}")
    A(f"v_exp_f32 v{G+2}, v{G+2}")
    A(f"v_exp_f32 v{H+2}, v{H+2}")
    A(f"v_lshlrev_b32 v{vT0}, 2, v0")
    A(f"v_mul_f32 v{G+3}, v{G+2}, v{G+3}")
    A(f"v_fma_f32 v{G+3}, v{H+2}, v{H+3}, v{G+3}")
    A(f"v_rcp_f32 v{G+3}, v{G+3}")
    A(f"v_mul_f32 v{G}, v{G+2}, v{G}")
    A(f"v_mul_f32 v{G+1}, v{G+2}, v{G+1}")
    A(f"v_fma_f32 v{G}, v{H+2}, v{H}, v{G}")
    A(f"v_fma_f32 v{G+1}, v{H+2}, v{H+1}, v{G+1}")
    A(f"v_mul_f32 v{G}, v{G+3}, v{G}")
    A(f"v_mul_f32 v{G+1}, v{G+3}, v{G+1}")
    A(f"v_cvt_pk_bf16_f32 v{G}, v{G}, v{G+1}")
    A(f"buffer_store_dword v{G}, v{vT0}, s[16:19], s{sQO} offen {fo}")
    Lb("L_fin")
    if stamps:
        A("s_waitcnt vmcnt(0)")
        stamp(3)
        A("s_waitcnt lgkmcnt(0)")
        for i in range(8):
            A(f"v_mov_b32 v{S+i}, s{ST+i}")
        A(f"v_mov_b32 v{S+1}, s{sI}")
        A(f"s_lshl_b32 s{sT0}, s2, 2")
        A(f"s_add_u32 s{sT0}, s{sT0}, s{sW}")
        A(f"s_lshl_b32 s{sT0}, s{sT0}, 5")
        A(f"s_add_u32 s{sT0}, s{sT0}, 0x10000000")
        A("s_mov_b64 exec, 1")
        A(f"buffer_store_dwordx4 v[{S}:{S+3}], v{vZero}, s[24:27], s{sT0} offen")
        A(f"buffer_store_dwordx4 v[{S+4}:{S+7}], v{vZero}, s[24:27], s{sT0} offen offset:16")
    Lb("L_end")
    A("s_endpgm")
    body = fix_hazards(o)
    tail = ['.section .rodata,"a"', ".p2align 6", f".amdhsa_kernel {KN}",
            f"  .amdhsa_next_free_vgpr {NV + 64}", "  .amdhsa_next_free_sgpr 72", f"  .amdhsa_accum_offset {NV}",
            "  .amdhsa_group_segment_fixed_size 0", "  .amdhsa_kernarg_size 48", "  .amdhsa_user_sgpr_count 2",
            "  .amdhsa_user_sgpr_kernarg_segment_ptr 1", "  .amdhsa_system_sgpr_workgroup_id_x 1"] + (["  .amdhsa_float_denorm_mode_32 3"] if denorm else []) + [".end_amdhsa_kernel"]
    return "\n".join(hdr + body + tail) + "\n"

if __name__ == "__main__":
    names = []
    for spec in sys.argv[1:]:
        kw = {}
        for p in spec.split(","):
            k, v = p.split("=")
            kw[k] = v.replace("_", " ") if k in ("fk", "fv", "fo") else int(v)
        fn = "k4_" + spec.replace(",", "-").replace("=", "") + ".s"
        open(fn, "w").write(gen(**kw))
        names.append(fn)
    print(" ".join(names))
```

```python
import re, sys
from gen4 import gen
txt = gen(NS0=12, NS1=10)
lines = txt.split("\n")
head = open("standalone__gqa_softmax__sampling.s.ref").read().split("\n")
kern_hdr = [l for l in head if l.startswith(";") and "@launch" not in l and "Override" not in l and "grid=ceil" not in l]
doc = """;
; GQA decode attention: out[b,h,:] = softmax(q[b,h,:] . K[b,h/4]^T / sqrt(128)) . V[b,h/4]
;
; Work split
;   Two workgroups (ids x and x^5, 4 waves each) share one (b,hkv).  Its 4096 keys form 128 units of
;   2 x 16 keys.  Each wave first walks a fixed list of units (12 for even ids, 10 for odd ids), then
;   draws the remaining 40 units from a per-pair ticket counter in d_ws (scalar atomic add), so that
;   workgroups with a lower memory rate take fewer units.
;   Every wave keeps an online softmax state (running max, sum, 4x128 accumulator).  The four waves are
;   combined through LDS; the odd workgroup publishes {o0,o1,-c*max,sum} granules in d_ws and the even
;   workgroup merges both halves and writes bf16 output.
;
; Hand-off protocol (placement independent)
;   Wave 0 of the odd workgroup fills the granule slot with 0xffffffff, resets the ticket counter and
;   then sets the pair's bit in d_debug.  Every wave checks that bit before its first ticket; the
;   merging waves poll the granules (sc1) until no word equals 0xffffffff.
;
; Per 16-key block (K and V rows are loaded with fully contiguous 1-KiB nt loads into AGPRs)
;   QK^T : one 16x16x32 MFMA per 4 keys; rows = (key, 64-byte quarter), columns = (quarter, head);
;          three DPP adds per MFMA collect the matching quarters into one packed score register.
;   PV   : two 16x16x16 MFMAs per 4 keys; A holds bf16(p) at element e' of row (e', head), B is the
;          V data as loaded, so no transpose is needed.
;
; SGPRs: s[4:7] K srd, s[8:11] V srd, s[12:15] Q srd, s[16:19] out srd, s[20:23] dbg srd, s[24:27] ws srd,
;        s3 wave, s28 (b,hkv), s29 role, s30 unit being loaded, s32 block offset, s33 iteration,
;        s35 ticket, s38/s39 +-log2(e)/sqrt(128), s40 static unit count, s[42:43] ticket counter
; VGPRs: v1/v2 K/V lane offsets, v[8:11] Q fragment, v[12:19] accumulators, v20 -c*max, v21 sum,
;        v[36:43] PV A operands, v[44:59] QK results, a[0:63] two K/V block buffers""".split("\n")
notes = {
    "s_cmp_ge_u32 s2, 256": "; surplus workgroups exit",
    "s_and_b32 s29, s2, 1": "; role and (b,hkv) index",
    "v_bfe_u32 v5, v26, 2, 2": "; lane offsets inside a 1-KiB K tile / V tile / the Q block",
    "s_mul_i32 s30, s29, 48": "; first static unit -> byte offset ((u&3) + 8*(u>>2)) * 4096",
    "s_xor_b32 s40, s29, 1": "; s40 == 0 only in wave 0 of the publishing workgroup",
    "s_mov_b32 s18, 0x20000": "; remaining descriptors, ticket counter and flag addresses",
    "s_cmp_eq_u32 s29, 0": None,
    "L_iter:": "; ---- main loop: two blocks per iteration",
    "L_next:": None,
    "L_chk:": "; ---- first ticket: wait until the slot is cleaned and the counter is initialised",
    "L_poll:": "; ---- merging workgroup: wait for the partner's granules, merge, store bf16",
    "s_barrier": None,
}
out = kern_hdr + doc + [lines[0]]
seen = set()
for i, l in enumerate(lines[1:]):
    k = l.strip()
    if k in notes and notes[k] and k not in seen:
        out.append(("  " if not k.endswith(":") else "") + notes[k]); seen.add(k)
    if k == "s_add_u32 s36, s33, 1": out.append("  ; next unit: static list or ticket")
    if k == "s_add_u32 s36, s33, 2": out.append("  ; request the ticket for the unit after next")
    if k.startswith("v_add_f32_dpp v44, v45"): out.append("  ; scores, running max, probabilities, rescale, PV operands")
    if k.startswith("v_add_f32_dpp v21, v21, v21 row_ror:4"): out.append("  ; ---- wave state -> LDS, combine the four waves (wave = head, lane = two dims)")
    if k == "v_min_u32 v40, -2, v40": out.append("  ; publishing workgroup: keep every word different from the empty marker")
    out.append(l)
open("standalone__gqa_softmax__sampling.s", "w").write("\n".join(out))
```

```python
import sys, struct, math
from asmlib import fix_hazards, check_seam
KN = "standalone__gqa_softmax__sampling_kernel"

def f2u(x):
    return struct.unpack("<I", struct.pack("<f", x))[0]

def gen(NS0=14, NS1=12, fk="nt", fv="nt", stamps=0, cstride=4352, px=5, early=0, cons=0, pf=0, ps=0, NSG=0, vfirst=0, pgmap=0, thr=0, TH=4, denorm=1, M=0, lin=0, nocomp=0, noproto=0, klate=0, qlast=0, alt=0, fo="", es=0, touch=0):
    W = 4; KEYS = 16; NBUF = 2; NL = 4
    US = (256 - NSG) // 2
    NUN = US + NSG
    POOL = 4 * (NS0 + NS1)
    full = NL * (2 * NBUF - 1)
    C = 128 ** -0.5 * math.log2(math.e)
    BIG = f2u(3.0e38)
    o = []
    A = lambda s: o.append("  " + s)
    Lb = lambda s: o.append(s + ":")
    vKo, vVo = 1, 2
    vT0, vT1, vT2 = 5, 6, 7
    Q = 8
    D1, D2 = 12, 16
    vNM, vL, vAl, vMx, vTm, vD = 20, 21, 22, 23, 24, 25
    vLane, vZero, vFlag = 26, 27, 28
    Z, P, Plo, Phi = 32, 33, 34, 35
    X = 36
    S = 44
    NV = 64
    sW, sBH, sRole = 3, 28, 29
    sU, sOff, sI, sTk, sT0, sT1 = 30, 32, 33, 35, 36, 37
    sC, sNC, sNS = 38, 39, 40
    sOff1, sSg, sSgN = 31, 34, 41
    sSib = 60
    sCnt = 42
    sDbg = 44
    sSlot, sFlagOff, sBit, sQO = 46, 47, 48, 49
    ST = 52
    bufsz = 32
    def aK(b, t): r = b * bufsz + t * 4; return f"a[{r}:{r+3}]"
    def aV(b, t, hf): r = b * bufsz + 16 + t * 4 + hf * 2; return f"a[{r}:{r+1}]"
    def aV4(b, t): r = b * bufsz + 16 + t * 4; return f"a[{r}:{r+3}]"
    def pstamp(i):
        if ps:
            A(f"s_memrealtime s[{ST+2*i}:{ST+2*i+1}]")
    def estamp(i):
        if es:
            A(f"s_memrealtime s[{ST+2*i}:{ST+2*i+1}]")
    padn = [0]
    def pad():
        if touch:
            Lb(f"L_pad{padn[0]}")
            padn[0] += 1
            A(f"s_cbranch_execz L_pad{padn[0]}")
    def stamp(i):
        if stamps and not (ps and i) and not es:
            A(f"s_memrealtime s[{ST+2*i}:{ST+2*i+1}]")
    def loadK(b):
        for t in range(NL):
            A(f"buffer_load_dwordx4 {aK(b,t)}, v{vKo}, s[4:7], s{sOff} offen offset:{t*1024} {fk}")
    def loadV(b):
        for t in range(NL):
            A(f"buffer_load_dwordx4 {aV4(b,t)}, v{vVo}, s[8:11], s{sOff} offen offset:{t*1024} {fv}")
    def unit_off(su):
        A(f"s_and_b32 s{sT0}, s{su}, 3")
        A(f"s_andn2_b32 s{sT1}, s{su}, 3")
        A(f"s_lshl1_add_u32 s{sT0}, s{sT1}, s{sT0}")
        A(f"s_lshl_b32 s{sOff}, s{sT0}, 12")
    def ticket():
        A(f"s_add_u32 s{sT0}, s{sI}, 2")
        A(f"s_cmp_lt_u32 s{sT0}, s{sNS}")
        A("s_cbranch_scc1 L_notk")
        if M:
            A(f"s_mov_b32 s{sTk}, 0x1000")
            A(f"s_cmp_ge_u32 s{sU}, s67")
        else:
            A(f"s_cmp_ge_u32 s{sU}, {NUN}")
        A("s_cbranch_scc1 L_notk")
        A(f"s_cmp_eq_u32 s{sT0}, s{sNS}")
        A("s_cbranch_scc1 L_chk")
        Lb("L_tk")
        A(f"s_mov_b32 s{sTk}, 1")
        A(f"s_atomic_add s{sTk}, s[{sCnt}:{sCnt+1}], 0 glc")
        if thr:
            for k in range(4):
                A(f"s_load_dword s{sSib+k}, s[64:65], {k*cstride} glc")
        Lb("L_notk")

    def step(b):
        n0 = len(o)
        step_(b)
        if nocomp:
            o[n0:] = [l for l in o[n0:] if not l.strip().startswith("v_")]
    def step_(b):
        A(f"s_waitcnt vmcnt({full})")
        for t in range(NL):
            A(f"v_mfma_f32_16x16x32_bf16 v[{S+4*t}:{S+4*t+3}], {aK(b,t)}, v[{Q}:{Q+3}], 0")
        if b == 0:
            A(f"s_add_u32 s{sT0}, s{sI}, 1")
            A(f"s_add_u32 s{sT1}, s{sU}, 4")
            A(f"s_cmp_lt_u32 s{sT0}, s{sNS}")
            A("s_waitcnt lgkmcnt(0)")
            A(f"s_cselect_b32 s{sU}, s{sT1}, s{sTk}")
            if thr:
                A(f"s_cselect_b32 s66, 0, s{sTk}")
                A(f"s_min_u32 s{sT0}, s{sSib}, s{sSib+1}")
                A(f"s_min_u32 s{sT1}, s{sSib+2}, s{sSib+3}")
                A(f"s_min_u32 s{sT0}, s{sT0}, s{sT1}")
                A(f"s_add_u32 s{sT0}, s{sT0}, {thr}")
                A(f"s_cmp_gt_u32 s66, s{sT0}")
                A(f"s_cselect_b32 s66, 1, 0")
            unit_off(sU)
            if NSG:
                A(f"s_add_u32 s{sOff1}, s{sOff}, 0x4000")
                A(f"s_add_u32 s{sT0}, s{sU}, {US}")
                A(f"s_lshl_b32 s{sT0}, s{sT0}, 12")
                A(f"s_cmp_ge_u32 s{sU}, {US}")
                A(f"s_cselect_b32 s{sOff}, s{sT0}, s{sOff}")
                A(f"s_cselect_b32 s{sOff1}, 0x100000, s{sOff1}")
                A(f"s_cselect_b32 s{sSgN}, 1, 0")
            A(f"s_add_u32 s{sT0}, s{sI}, 3")
            A(f"s_cmp_lg_u32 s{sT0}, s{sNS}")
            A("s_cbranch_scc1 L_nofld")
            A(f"buffer_load_dword v{vFlag}, v{vZero}, s[20:23], s{sFlagOff} offen sc1")
            Lb("L_nofld")
        elif NSG:
            A(f"s_mov_b32 s{sOff}, s{sOff1}")
        else:
            A(f"s_add_u32 s{sOff}, s{sOff}, 0x4000")
        if thr:
            A("s_cmp_eq_u32 s66, 0")
            A(f"s_cbranch_scc1 L_noth{b}")
            A(f"s_waitcnt vmcnt({TH})")
            Lb(f"L_noth{b}")
        loadK(b)
        if b == (0 if early else 1):
            ticket()
        for t in range(NL):
            r = lambda j: S + 4 * t + ((t + j) & 3)
            A(f"v_add_f32_dpp v{r(0)}, v{r(1)}, v{r(0)} row_ror:12 row_mask:0xf bank_mask:0xf")
            A(f"v_add_f32_dpp v{r(2)}, v{r(3)}, v{r(2)} row_ror:12 row_mask:0xf bank_mask:0xf")
        for t in range(4):
            r = lambda j: S + 4 * t + ((t + j) & 3)
            A(f"v_add_f32_dpp v{Z}, v{r(2)}, v{r(0)} row_ror:8 row_mask:0xf bank_mask:{1<<t:#x}")
        A(f"v_max_f32_dpp v{vMx}, v{Z}, v{Z} row_ror:4 row_mask:0xf bank_mask:0xf")
        A(f"v_max_f32_dpp v{vMx}, v{vMx}, v{vMx} row_ror:8 row_mask:0xf bank_mask:0xf")
        A(f"v_mov_b32 v{vTm}, v{vMx}")
        A(f"v_permlane16_swap_b32 v{vTm}, v{vMx}")
        A(f"v_max_f32 v{vMx}, v{vTm}, v{vMx}")
        A(f"v_mov_b32 v{vTm}, v{vMx}")
        A(f"v_permlane32_swap_b32 v{vTm}, v{vMx}")
        A(f"v_max_f32 v{vMx}, v{vTm}, v{vMx}")
        A(f"v_mul_f32 v{vMx}, s{sNC}, v{vMx}")
        A(f"v_min_f32 v{vMx}, v{vMx}, v{vNM}")
        A(f"v_sub_f32 v{vD}, v{vMx}, v{vNM}")
        A(f"v_fma_f32 v{P}, v{Z}, s{sC}, v{vMx}")
        A(f"v_exp_f32 v{vAl}, v{vD}")
        A(f"v_exp_f32 v{P}, v{P}")
        A(f"v_mov_b32 v{vNM}, v{vMx}")
        A(f"v_cvt_pk_bf16_f32 v{Plo}, v{P}, 0")
        A(f"v_cvt_pk_bf16_f32 v{Phi}, 0, v{P}")
        A(f"v_fma_f32 v{vL}, v{vL}, v{vAl}, v{P}")
        for j in range(4):
            A(f"v_mul_f32_dpp v{D1+j}, v{vAl}, v{D1+j} quad_perm:[{j},{j},{j},{j}] row_mask:0xf bank_mask:0xf")
            A(f"v_mul_f32_dpp v{D2+j}, v{vAl}, v{D2+j} quad_perm:[{j},{j},{j},{j}] row_mask:0xf bank_mask:0xf")
        for e in range(4):
            for t in range(NL):
                src = Plo if e % 2 == 0 else Phi
                dst = X + 2 * t + (e >> 1)
                rot = (4 * (e - t)) % 16
                ctl = "quad_perm:[0,1,2,3]" if rot == 0 else f"row_ror:{rot}"
                A(f"v_mov_b32_dpp v{dst}, v{src} {ctl} row_mask:0xf bank_mask:{1<<e:#x}")
        A(f"s_waitcnt vmcnt({full})")
        for t in range(NL):
            A(f"v_mfma_f32_16x16x16_bf16 v[{D1}:{D1+3}], v[{X+2*t}:{X+2*t+1}], {aV(b,t,0)}, v[{D1}:{D1+3}]")
            A(f"v_mfma_f32_16x16x16_bf16 v[{D2}:{D2+3}], v[{X+2*t}:{X+2*t+1}], {aV(b,t,1)}, v[{D2}:{D2+3}]")
        loadV(b)

    lds = W * 2048 + W * 32
    hdr = [f"; @launch grid=(256,1,1) block=(256,1,1) lds={lds}",
           '.amdgcn_target "amdgcn-amd-amdhsa--gfx950"', ".text", f".globl {KN}", ".p2align 8",
           f".type {KN},@function", f"{KN}:"]
    A("s_load_dwordx2 s[4:5], s[0:1], 8")
    A("s_load_dwordx2 s[8:9], s[0:1], 16")
    A("s_load_dwordx2 s[24:25], s[0:1], 40")
    A("s_load_dwordx2 s[12:13], s[0:1], 0")
    A("s_load_dwordx2 s[20:21], s[0:1], 32")
    A("s_load_dwordx2 s[16:17], s[0:1], 24")
    stamp(0)
    A("s_cmp_ge_u32 s2, 256")
    A("s_cbranch_scc1 L_end")
    A(f"v_lshrrev_b32 v{vT0}, 6, v0")
    A(f"v_and_b32 v{vLane}, 63, v0")
    A(f"v_readfirstlane_b32 s{sW}, v{vT0}")
    A(f"s_and_b32 s{sRole}, s2, 1")
    A(f"s_mul_i32 s{sT0}, s{sRole}, {px}")
    A(f"s_xor_b32 s{sBH}, s2, s{sT0}")
    if pgmap:
        A(f"s_and_b32 s{sT0}, s{sBH}, 6")
        A(f"s_bfe_u32 s{sT1}, s{sBH}, 0x10003")
        A(f"s_lshr_b32 s{sBH}, s{sBH}, 4")
        A(f"s_lshl3_add_u32 s{sBH}, s{sBH}, s{sT0}")
        A(f"s_add_u32 s{sBH}, s{sBH}, s{sT1}")
    else:
        A(f"s_lshr_b32 s{sBH}, s{sBH}, 1")
    A(f"v_bfe_u32 v{vT0}, v{vLane}, 2, 2")
    A(f"v_and_b32 v{vT1}, 48, v{vLane}")
    A(f"v_and_b32 v{vT2}, 3, v{vLane}")
    A(f"v_lshlrev_b32 v{vT1}, 2, v{vT1}")
    A(f"v_lshl_add_u32 v{vKo}, v{vT0}, 8, v{vT1}")
    A(f"v_lshl_add_u32 v{vKo}, v{vT2}, 4, v{vKo}")
    A(f"v_lshlrev_b32 v{vVo}, 4, v{vLane}")
    if lin:
        A(f"v_mov_b32 v{vKo}, v{vVo}")
    A(f"s_mul_i32 s{sU}, s{sRole}, {4*NS0}")
    A(f"s_add_u32 s{sU}, s{sU}, s{sW}")
    unit_off(sU)
    A(f"s_lshl_b32 s{sT0}, s{sBH}, 20")
    A("s_mov_b32 s6, 0x100000"); A("s_mov_b32 s7, 0x20000")
    A("s_mov_b32 s10, 0x100000"); A("s_mov_b32 s11, 0x20000")
    A(f"v_lshl_add_u32 v{vTm}, v{vT2}, 8, v{vT1}")
    A(f"v_lshl_add_u32 v{vTm}, v{vT0}, 4, v{vTm}")
    A("s_mov_b32 s14, 0x20000"); A("s_mov_b32 s15, 0x20000")
    A("s_mov_b32 s26, 0x20000000"); A("s_mov_b32 s27, 0x20000")
    A(f"s_lshl_b32 s{sQO}, s{sBH}, 10")
    A(f"s_lshl_b32 s{sSlot}, s{sBH}, 12")
    A(f"s_xor_b32 s{sNS}, s{sRole}, {1 - cons}")
    A(f"s_or_b32 s{sNS}, s{sNS}, s{sW}")
    if noproto:
        A(f"s_mov_b32 s{sNS}, 1")
    if qlast:
        if alt:
            A(f"s_bitcmp1_b32 s2, {alt}")
        A("s_waitcnt lgkmcnt(0)")
        pstamp(1)
        if alt:
            A("s_cbranch_scc1 L_vk")
        A(f"s_add_u32 s4, s4, s{sT0}"); A("s_addc_u32 s5, s5, 0")
        loadK(0)
        A(f"s_add_u32 s8, s8, s{sT0}"); A("s_addc_u32 s9, s9, 0")
        loadV(0)
        if alt:
            A("s_branch L_kv")
            Lb("L_vk")
            A(f"s_add_u32 s8, s8, s{sT0}"); A("s_addc_u32 s9, s9, 0")
            loadV(0)
            A(f"s_add_u32 s4, s4, s{sT0}"); A("s_addc_u32 s5, s5, 0")
            loadK(0)
            Lb("L_kv")
        A(f"s_add_u32 s{sOff}, s{sOff}, 0x4000")
        loadK(1); loadV(1)
        A(f"buffer_load_dwordx4 v[{Q}:{Q+3}], v{vTm}, s[12:15], s{sQO} offen")
        pstamp(2)
        for i in range(4):
            A(f"v_mov_b32 v{S+i}, -1")
        A(f"s_cmp_lg_u32 s{sNS}, 0")
        A("s_cbranch_scc1 L_noclean")
        for i in range(4):
            A(f"buffer_store_dwordx4 v[{S}:{S+3}], v{vVo}, s[24:27], s{sSlot} offen offset:{i*1024} sc1")
        Lb("L_noclean")
    else:
        for i in range(4):
            A(f"v_mov_b32 v{S+i}, -1")
        A(f"s_cmp_lg_u32 s{sNS}, 0")
        A("s_waitcnt lgkmcnt(0)")
        A("s_cbranch_scc1 L_noclean")
        for i in range(4):
            A(f"buffer_store_dwordx4 v[{S}:{S+3}], v{vVo}, s[24:27], s{sSlot} offen offset:{i*1024} sc1")
        Lb("L_noclean")
        pstamp(1)
        A(f"s_add_u32 s4, s4, s{sT0}"); A("s_addc_u32 s5, s5, 0")
        A(f"s_add_u32 s8, s8, s{sT0}"); A("s_addc_u32 s9, s9, 0")
        if vfirst:
            A(f"buffer_load_dwordx4 {aK(0,0)}, v{vKo}, s[4:7], s{sOff} offen {fk}")
            A(f"buffer_load_dwordx4 {aV4(0,0)}, v{vVo}, s[8:11], s{sOff} offen {fv}")
            A(f"buffer_load_dwordx4 v[{Q}:{Q+3}], v{vTm}, s[12:15], s{sQO} offen")
            for t in range(1, 4):
                A(f"buffer_load_dwordx4 {aK(0,t)}, v{vKo}, s[4:7], s{sOff} offen offset:{t*1024} {fk}")
            for t in range(1, 4):
                A(f"buffer_load_dwordx4 {aV4(0,t)}, v{vVo}, s[8:11], s{sOff} offen offset:{t*1024} {fv}")
        else:
            loadK(0)
            A(f"buffer_load_dwordx4 v[{Q}:{Q+3}], v{vTm}, s[12:15], s{sQO} offen")
            loadV(0)
        A(f"s_add_u32 s{sOff}, s{sOff}, 0x4000")
        loadK(1); loadV(1)
        pstamp(2)
    A("s_mov_b32 s18, 0x20000"); A("s_mov_b32 s19, 0x20000")
    A("s_mov_b32 s22, 256"); A("s_mov_b32 s23, 0x20000")
    A(f"s_mul_i32 s{sT0}, s{sBH}, {cstride}")
    A(f"s_add_u32 s{sT0}, s{sT0}, 0x400000")
    A(f"s_add_u32 s{sCnt}, s24, s{sT0}"); A(f"s_addc_u32 s{sCnt+1}, s25, 0")
    if thr:
        A(f"s_andn2_b32 s{sT0}, s{sBH}, 3")
        A(f"s_mul_i32 s{sT0}, s{sT0}, {cstride}")
        A(f"s_add_u32 s{sT0}, s{sT0}, 0x400000")
        A(f"s_add_u32 s64, s24, s{sT0}"); A("s_addc_u32 s65, s25, 0")
        for k in range(4):
            A(f"s_mov_b32 s{sSib+k}, 0")
    A(f"s_and_b32 s{sT0}, s{sBH}, 63")
    A(f"s_lshl_b32 s{sFlagOff}, s{sT0}, 2")
    A(f"s_lshr_b32 s{sT0}, s{sBH}, 6")
    A(f"s_lshl_b32 s{sBit}, 1, s{sT0}")
    A(f"v_mov_b32 v{vZero}, 0")
    A(f"s_cmp_lg_u32 s{sNS}, 0")
    A("s_cbranch_scc1 L_nosig")
    A(f"s_add_u32 s{sDbg}, s20, s{sFlagOff}"); A(f"s_addc_u32 s{sDbg+1}, s21, 0")
    A(f"s_mov_b32 s{sTk}, {POOL}")
    A(f"s_atomic_swap s{sTk}, s[{sCnt}:{sCnt+1}], 0 glc")
    A(f"s_mov_b32 s{sT0}, s{sBit}")
    A(f"s_waitcnt vmcnt({0 if qlast else 4*NL+1}) lgkmcnt(0)")
    A(f"s_atomic_or s{sT0}, s[{sDbg}:{sDbg+1}], 0")
    Lb("L_nosig")
    A(f"s_cmp_eq_u32 s{sRole}, 0")
    A(f"s_cselect_b32 s{sNS}, {NS0}, {NS1}")
    if M:
        A(f"s_cmp_eq_u32 s{sRole}, {cons}")
        A(f"s_cselect_b32 s67, 0, {M}")
        A(f"s_sub_u32 s67, {NUN}, s67")
    A(f"s_mov_b32 s{sC}, {f2u(C):#x}")
    A(f"s_mov_b32 s{sNC}, {f2u(-C):#x}")
    A(f"s_mov_b32 s{sI}, 0")
    A(f"s_mov_b32 s{sSg}, 0")
    A(f"v_mov_b32 v{vNM}, {BIG:#x}")
    A(f"v_mov_b32 v{vL}, 0")
    for j in range(4):
        A(f"v_mov_b32 v{D1+j}, 0"); A(f"v_mov_b32 v{D2+j}, 0")
    for j in range(2 * NL):
        A(f"v_mov_b32 v{X+j}, 0")
    if qlast:
        A("s_waitcnt vmcnt(0)")
    if vfirst:
        A(f"s_waitcnt vmcnt({full-1})")
    if stamps:
        A(f"s_waitcnt vmcnt({full})")
        stamp(1)
        pstamp(3)
    start = len(o)
    Lb("L_iter")
    for b in range(NBUF):
        if b == 1 and NSG:
            A(f"s_cmp_lg_u32 s{sSg}, 0")
            A("s_cbranch_scc1 L_skip1")
        step(b)
    Lb("L_next")
    if NSG:
        A(f"s_mov_b32 s{sSg}, s{sSgN}")
    A(f"s_add_u32 s{sI}, s{sI}, 1")
    A(f"s_cmp_lt_u32 s{sU}, {NUN}")
    A("s_cbranch_scc1 L_iter")
    assert check_seam([l for l in o[start:]])
    stamp(2)
    A(f"v_add_f32_dpp v{vL}, v{vL}, v{vL} row_ror:4 row_mask:0xf bank_mask:0xf")
    A(f"v_and_b32 v{vT0}, 15, v{vLane}")
    A(f"v_lshrrev_b32 v{vT1}, 4, v{vLane}")
    A(f"v_add_f32_dpp v{vL}, v{vL}, v{vL} row_ror:8 row_mask:0xf bank_mask:0xf")
    A(f"v_lshlrev_b32 v{vT0}, 5, v{vT0}")
    A(f"v_lshl_add_u32 v{vT0}, v{vT1}, 2, v{vT0}")
    A(f"s_lshl_b32 s{sT0}, s{sW}, 11")
    A(f"v_mov_b32 v{vTm}, v{vL}")
    A(f"v_add_u32 v{vT0}, s{sT0}, v{vT0}")
    A(f"s_lshl_b32 s{sT0}, s{sW}, 5")
    A(f"v_permlane16_swap_b32 v{vTm}, v{vL}")
    for j in range(4):
        A(f"ds_write_b32 v{vT0}, v{D1+j} offset:{j*512}")
        A(f"ds_write_b32 v{vT0}, v{D2+j} offset:{j*512+16}")
    A(f"v_add_f32 v{vL}, v{vTm}, v{vL}")
    A(f"s_add_u32 s{sT0}, s{sT0}, {W*2048}")
    A(f"v_mov_b32 v{vTm}, v{vL}")
    A(f"v_lshlrev_b32 v{vT1}, 3, v{vT2}")
    A(f"v_add_u32 v{vT1}, s{sT0}, v{vT1}")
    A(f"v_permlane32_swap_b32 v{vTm}, v{vL}")
    A(f"v_add_f32 v{vL}, v{vTm}, v{vL}")
    A("s_mov_b64 exec, 15")
    A(f"ds_write_b64 v{vT1}, v[{vNM}:{vNM+1}]")
    A("s_mov_b64 exec, -1")
    A(f"s_lshl_b32 s{sT0}, s{sW}, 9")
    A(f"v_lshlrev_b32 v{vT0}, 3, v{vLane}")
    A(f"v_add_u32 v{vT0}, s{sT0}, v{vT0}")
    A(f"s_lshl_b32 s{sT0}, s{sW}, 3")
    A(f"s_add_u32 s{sT0}, s{sT0}, {W*2048}")
    A(f"v_mov_b32 v{vT1}, s{sT0}")
    A(f"v_lshlrev_b32 v{vT2}, 4, v0")
    H = 36
    A(f"s_cmp_lg_u32 s{sRole}, {cons}")
    A("s_cbranch_scc1 L_nopre")
    A(f"buffer_load_dwordx4 v[{H}:{H+3}], v{vT2}, s[24:27], s{sSlot} offen sc1")
    Lb("L_nopre")
    if touch:
        A("s_mov_b64 exec, 0")
        A("s_branch L_pad0")
        Lb("L_back")
        A("s_mov_b64 exec, -1")
    A("s_waitcnt lgkmcnt(0)")
    estamp(0)
    A("s_barrier")
    estamp(1)
    POST = len(o)
    O = S; ML = S + 8
    for w in range(W):
        A(f"ds_read_b64 v[{ML+2*w}:{ML+2*w+1}], v{vT1} offset:{w*32}")
    for w in range(W):
        A(f"ds_read_b64 v[{O+2*w}:{O+2*w+1}], v{vT0} offset:{w*2048}")
    G = 40
    A(f"s_waitcnt lgkmcnt({W})")
    A(f"v_min_f32 v{G+2}, v{ML}, v{ML+2}")
    A(f"v_min3_f32 v{G+2}, v{G+2}, v{ML+4}, v{ML+6}")
    for w in range(W): A(f"v_sub_f32 v{ML+2*w}, v{G+2}, v{ML+2*w}")
    for w in range(W): A(f"v_exp_f32 v{ML+2*w}, v{ML+2*w}")
    A(f"v_mul_f32 v{G+3}, v{ML}, v{ML+1}")
    for w in range(1, W): A(f"v_fma_f32 v{G+3}, v{ML+2*w}, v{ML+2*w+1}, v{G+3}")
    A("s_waitcnt lgkmcnt(0)")
    A(f"v_mul_f32 v{G}, v{ML}, v{O}")
    A(f"v_mul_f32 v{G+1}, v{ML}, v{O+1}")
    for w in range(1, W):
        A(f"v_fma_f32 v{G}, v{ML+2*w}, v{O+2*w}, v{G}")
        A(f"v_fma_f32 v{G+1}, v{ML+2*w}, v{O+2*w+1}, v{G+1}")
    estamp(2)
    A(f"s_cmp_eq_u32 s{sRole}, {cons}")
    A("s_cbranch_scc1 L_consumer")
    for i in range(4):
        A(f"v_min_u32 v{G+i}, -2, v{G+i}")
    A(f"buffer_store_dwordx4 v[{G}:{G+3}], v{vT2}, s[24:27], s{sSlot} offen sc1")
    A("s_branch L_fin")
    if NSG:
        Lb("L_skip1")
        A(f"s_mov_b32 s{sOff}, s{sOff1}")
        A(f"s_cmp_ge_u32 s{sU}, {NUN}")
        A("s_cbranch_scc1 L_skip2")
        A(f"s_mov_b32 s{sTk}, 1")
        A(f"s_atomic_add s{sTk}, s[{sCnt}:{sCnt+1}], 0 glc")
        Lb("L_skip2")
        loadK(1); loadV(1)
        A("s_branch L_next")
    Lb("L_chk")
    A(f"s_mov_b32 s{sT1}, 0x100000")
    Lb("L_chk1")
    A(f"v_readfirstlane_b32 s{sT0}, v{vFlag}")
    A(f"s_and_b32 s{sT0}, s{sT0}, s{sBit}")
    if noproto:
        A(f"s_mov_b32 s{sTk}, 0x1000")
        A("s_branch L_notk")
    A("s_cbranch_scc1 L_tk")
    A(f"s_sub_u32 s{sT1}, s{sT1}, 1")
    A("s_cbranch_scc1 L_tk")
    A("s_sleep 8")
    A(f"buffer_load_dword v{vFlag}, v{vZero}, s[20:23], s{sFlagOff} offen sc1")
    A("s_waitcnt vmcnt(0)")
    A("s_branch L_chk1")
    Lb("L_poll")
    A(f"buffer_load_dwordx4 v[{H}:{H+3}], v{vT2}, s[24:27], s{sSlot} offen sc1")
    Lb("L_consumer")
    A(f"s_sub_u32 s{sI}, s{sI}, 0x1000")
    A("s_waitcnt vmcnt(0)")
    A(f"v_max3_u32 v{vT1}, v{H}, v{H+1}, v{H+2}")
    A(f"v_max_u32 v{vT1}, v{vT1}, v{H+3}")
    A(f"s_cmp_lt_u32 s{sI}, 0x1000")
    A("s_cbranch_scc1 L_got")
    if not noproto:
        A(f"v_cmp_eq_u32 vcc, -1, v{vT1}")
        A("s_cbranch_vccnz L_poll")
    Lb("L_got")
    A(f"v_min_f32 v{vMx}, v{G+2}, v{H+2}")
    A(f"v_sub_f32 v{G+2}, v{vMx}, v{G+2}")
    A(f"v_sub_f32 v{H+2}, v{vMx}, v{H+2}")
    A(f"v_exp_f32 v{G+2}, v{G+2}")
    A(f"v_exp_f32 v{H+2}, v{H+2}")
    A(f"v_lshlrev_b32 v{vT0}, 2, v0")
    A(f"v_mul_f32 v{G+3}, v{G+2}, v{G+3}")
    A(f"v_fma_f32 v{G+3}, v{H+2}, v{H+3}, v{G+3}")
    A(f"v_rcp_f32 v{G+3}, v{G+3}")
    A(f"v_mul_f32 v{G}, v{G+2}, v{G}")
    A(f"v_mul_f32 v{G+1}, v{G+2}, v{G+1}")
    A(f"v_fma_f32 v{G}, v{H+2}, v{H}, v{G}")
    A(f"v_fma_f32 v{G+1}, v{H+2}, v{H+1}, v{G+1}")
    A(f"v_mul_f32 v{G}, v{G+3}, v{G}")
    A(f"v_mul_f32 v{G+1}, v{G+3}, v{G+1}")
    A(f"v_cvt_pk_bf16_f32 v{G}, v{G}, v{G+1}")
    A(f"buffer_store_dword v{G}, v{vT0}, s[16:19], s{sQO} offen {fo}")
    Lb("L_fin")
    if touch:
        post = o[POST:]
        del o[POST:]
        cnt = 0
        skip = False
        for l in post:
            if l.startswith("L_chk:") or l.startswith("L_skip1:"):
                skip = True
            if l.startswith("L_poll:"):
                skip = False
            if not skip and not l.endswith(":"):
                if cnt % touch == 0:
                    pad()
                cnt += 1
            o.append(l)
        A("s_branch L_fin2")
        Lb(f"L_pad{padn[0]}")
        A("s_branch L_back")
        Lb("L_fin2")
    if stamps:
        estamp(3)
        A("s_waitcnt vmcnt(0)")
        stamp(3)
        A("s_waitcnt lgkmcnt(0)")
        for i in range(8):
            A(f"v_mov_b32 v{S+i}, s{ST+i}")
        A(f"v_mov_b32 v{S+1}, s{sI}")
        A(f"s_lshl_b32 s{sT0}, s2, 2")
        A(f"s_add_u32 s{sT0}, s{sT0}, s{sW}")
        A(f"s_lshl_b32 s{sT0}, s{sT0}, 5")
        A(f"s_add_u32 s{sT0}, s{sT0}, 0x10000000")
        A("s_mov_b64 exec, 1")
        A(f"buffer_store_dwordx4 v[{S}:{S+3}], v{vZero}, s[24:27], s{sT0} offen")
        A(f"buffer_store_dwordx4 v[{S+4}:{S+7}], v{vZero}, s[24:27], s{sT0} offen offset:16")
    Lb("L_end")
    A("s_endpgm")
    body = fix_hazards(o)
    tail = ['.section .rodata,"a"', ".p2align 6", f".amdhsa_kernel {KN}",
            f"  .amdhsa_next_free_vgpr {NV + 64}", "  .amdhsa_next_free_sgpr 72", f"  .amdhsa_accum_offset {NV}",
            "  .amdhsa_group_segment_fixed_size 0", "  .amdhsa_kernarg_size 48", "  .amdhsa_user_sgpr_count 2",
            "  .amdhsa_user_sgpr_kernarg_segment_ptr 1", "  .amdhsa_system_sgpr_workgroup_id_x 1"] + (["  .amdhsa_float_denorm_mode_32 3"] if denorm else []) + [".end_amdhsa_kernel"]
    return "\n".join(hdr + body + tail) + "\n"

if __name__ == "__main__":
    names = []
    for spec in sys.argv[1:]:
        kw = {}
        for p in spec.split(","):
            k, v = p.split("=")
            kw[k] = v.replace("_", " ") if k in ("fk", "fv", "fo") else int(v)
        fn = "k4_" + spec.replace(",", "-").replace("=", "") + ".s"
        open(fn, "w").write(gen(**kw))
        names.append(fn)
    print(" ".join(names))
```

```python
import re, sys
from gen4 import gen
txt = gen(NS0=12, NS1=10, cons=1)
lines = txt.split("\n")
head = open("standalone__gqa_softmax__sampling.s.ref").read().split("\n")
kern_hdr = [l for l in head if l.startswith(";") and "@launch" not in l and "Override" not in l and "grid=ceil" not in l]
doc = """;
; GQA decode attention: out[b,h,:] = softmax(q[b,h,:] . K[b,h/4]^T / sqrt(128)) . V[b,h/4]
;
; Work split
;   Two workgroups (ids x and x^5, 4 waves each) share one (b,hkv).  Its 4096 keys form 128 units of
;   2 x 16 keys.  Each wave first walks a fixed list of units (12 for even ids, 10 for odd ids), then
;   draws the remaining 40 units from a per-pair ticket counter in d_ws (scalar atomic add), so that
;   workgroups with a lower memory rate take fewer units.
;   Every wave keeps an online softmax state (running max, sum, 4x128 accumulator).  The four waves are
;   combined through LDS; the even workgroup publishes {o0,o1,-c*max,sum} granules in d_ws and the odd
;   workgroup merges both halves and writes bf16 output.
;
; Hand-off protocol (placement independent)
;   Wave 0 of the even workgroup fills the granule slot with 0xffffffff, resets the ticket counter and
;   then sets the pair's bit in d_debug.  Every wave checks that bit before its first ticket; the
;   merging waves poll the granules (sc1) until no word equals 0xffffffff.
;
; Per 16-key block (K and V rows are loaded with fully contiguous 1-KiB nt loads into AGPRs)
;   QK^T : one 16x16x32 MFMA per 4 keys; rows = (key, 64-byte quarter), columns = (quarter, head);
;          three DPP adds per MFMA collect the matching quarters into one packed score register.
;   PV   : two 16x16x16 MFMAs per 4 keys; A holds bf16(p) at element e' of row (e', head), B is the
;          V data as loaded, so no transpose is needed.
;
; SGPRs: s[4:7] K srd, s[8:11] V srd, s[12:15] Q srd, s[16:19] out srd, s[20:23] dbg srd, s[24:27] ws srd,
;        s3 wave, s28 (b,hkv), s29 role, s30 unit being loaded, s32 block offset, s33 iteration,
;        s35 ticket, s38/s39 +-log2(e)/sqrt(128), s40 static unit count, s[42:43] ticket counter
; VGPRs: v1/v2 K/V lane offsets, v[8:11] Q fragment, v[12:19] accumulators, v20 -c*max, v21 sum,
;        v[36:43] PV A operands, v[44:59] QK results, a[0:63] two K/V block buffers""".split("\n")
notes = {
    "s_cmp_ge_u32 s2, 256": "; surplus workgroups exit",
    "s_and_b32 s29, s2, 1": "; role and (b,hkv) index",
    "v_bfe_u32 v5, v26, 2, 2": "; lane offsets inside a 1-KiB K tile / V tile / the Q block",
    "s_mul_i32 s30, s29, 48": "; first static unit -> byte offset ((u&3) + 8*(u>>2)) * 4096",
    "s_xor_b32 s40, s29, 0": "; s40 == 0 only in wave 0 of the publishing workgroup",
    "s_mov_b32 s18, 0x20000": "; remaining descriptors, ticket counter and flag addresses",
    "s_cmp_eq_u32 s29, 0": None,
    "L_iter:": "; ---- main loop: two blocks per iteration",
    "L_next:": None,
    "L_chk:": "; ---- first ticket: wait until the slot is cleaned and the counter is initialised",
    "L_poll:": "; ---- merging workgroup: wait for the partner's granules, merge, store bf16",
    "s_barrier": None,
}
out = kern_hdr + doc + [lines[0]]
seen = set()
for i, l in enumerate(lines[1:]):
    k = l.strip()
    if k in notes and notes[k] and k not in seen:
        out.append(("  " if not k.endswith(":") else "") + notes[k]); seen.add(k)
    if k == "s_add_u32 s36, s33, 1": out.append("  ; next unit: static list or ticket")
    if k == "s_add_u32 s36, s33, 2": out.append("  ; request the ticket for the unit after next")
    if k.startswith("v_add_f32_dpp v44, v45"): out.append("  ; scores, running max, probabilities, rescale, PV operands")
    if k.startswith("v_add_f32_dpp v21, v21, v21 row_ror:4"): out.append("  ; ---- wave state -> LDS, combine the four waves (wave = head, lane = two dims)")
    if k == "v_min_u32 v40, -2, v40": out.append("  ; publishing workgroup: keep every word different from the empty marker")
    out.append(l)
open("standalone__gqa_softmax__sampling.s", "w").write("\n".join(out))
```

```python
import sys, struct, math
from asmlib import fix_hazards, check_seam
KN = "standalone__gqa_softmax__sampling_kernel"

def f2u(x):
    return struct.unpack("<I", struct.pack("<f", x))[0]

def gen(R=24, NS0=2, NS1=2, stamps=0, cstride=4352, px=5, cons=1, pb=1, lb=2, ub=0, sigit=2):
    W = 4; NL = 4
    fk = fv = "nt"
    assert ((256 - 8 * R) // 2 - 4 * (NS0 + NS1)) // 4 + 1 <= 16
    assert R % 4 == 0 and NS0 >= 2 and NS1 >= 2 and R // 4 > sigit
    UB = 8 * R * 4096
    NUN = (256 - 8 * R) // 2
    POOL = 4 * (NS0 + NS1)
    C = 128 ** -0.5 * math.log2(math.e)
    BIG = f2u(3.0e38)
    TINY = f2u(1e-37)
    o = []
    A = lambda s: o.append("  " + s)
    Lb = lambda s: o.append(s + ":")
    Cm = lambda s: o.append("  ; " + s)
    vKo, vVo, vR, vOne = 1, 2, 3, 4
    vT0, vT1, vT2 = 5, 6, 7
    Q = 8
    D1, D2 = 12, 16
    vNM, vL, vAl, vMx, vTm, vD = 20, 21, 22, 23, 24, 25
    vLane, vZero, vFlag, vE = 26, 27, 28, 29
    vRing = 30
    Z, P, Plo, Phi = 32, 33, 34, 35
    X = 36
    S = 44
    vCA, vCB = 60, 61
    ZA = 64
    NV = 64 + R
    sW, sBH, sRole = 3, 28, 29
    sU, sEl, sOff, sI = 30, 31, 32, 33
    sTk, sTag = 34, 35
    sT0, sT1, sC, sNC, sNS, sLead = 36, 37, 38, 39, 40, 41
    sCnt, sDbg = 42, 44
    sSlot, sFlagOff, sBit, sQO = 46, 47, 48, 49
    ST = 52
    WA, WB, sO, sRun, sNext, sN = 60, 64, 68, 72, 73, 74
    REQ = W * 2048 + W * 32
    def stamp(i):
        if stamps:
            A(f"s_memrealtime s[{ST+2*i}:{ST+2*i+1}]")
    def load4(buf, vo, srd, so, fl):
        for t in range(4):
            r = 16 * buf + 4 * t
            A(f"buffer_load_dwordx4 a[{r}:{r+3}], v{vo}, s[{srd}:{srd+3}], s{so} offen offset:{t*1024} {fl}")
    def refill(b):
        load4(b, vCA if b % 2 == 0 else vCB, WA if b % 2 == 0 else WB, sO + b, fk)
    def unit_off():
        A(f"s_and_b32 s{sT0}, s{sU}, 3")
        A(f"s_andn2_b32 s{sT1}, s{sU}, 3")
        A(f"s_lshl1_add_u32 s{sT0}, s{sT1}, s{sT0}")
        A(f"s_lshl_b32 s{sOff}, s{sT0}, 12")
        A(f"s_add_u32 s{sOff}, s{sOff}, {UB}")
    def seto():
        for b in range(4):
            A(f"s_add_u32 s{sO+b}, s{sNext}, {b*0x4000}")
    def zshift():
        for j in range(R - 4):
            A(f"v_mov_b32 v{ZA+j}, v{ZA+j+4}")
    def qk(buf):
        for t in range(4):
            r = 16 * buf + 4 * t
            A(f"v_mfma_f32_16x16x32_bf16 v[{S+4*t}:{S+4*t+3}], a[{r}:{r+3}], v[{Q}:{Q+3}], 0")
    def pv(buf):
        for t in range(4):
            r = 16 * buf + 4 * t
            A(f"v_mfma_f32_16x16x16_bf16 v[{D1}:{D1+3}], v[{X+2*t}:{X+2*t+1}], a[{r}:{r+1}], v[{D1}:{D1+3}]")
            A(f"v_mfma_f32_16x16x16_bf16 v[{D2}:{D2+3}], v[{X+2*t}:{X+2*t+1}], a[{r+2}:{r+3}], v[{D2}:{D2+3}]")
    def scores(dst):
        for t in range(4):
            r = lambda j: S + 4 * t + ((t + j) & 3)
            A(f"v_add_f32_dpp v{r(0)}, v{r(1)}, v{r(0)} row_ror:12 row_mask:0xf bank_mask:0xf")
            A(f"v_add_f32_dpp v{r(2)}, v{r(3)}, v{r(2)} row_ror:12 row_mask:0xf bank_mask:0xf")
        for t in range(4):
            r = lambda j: S + 4 * t + ((t + j) & 3)
            A(f"v_add_f32_dpp v{dst}, v{r(2)}, v{r(0)} row_ror:8 row_mask:0xf bank_mask:{1<<t:#x}")
    def wavemax(src):
        A(f"v_max_f32_dpp v{vMx}, v{src}, v{src} row_ror:4 row_mask:0xf bank_mask:0xf")
        A(f"v_max_f32_dpp v{vMx}, v{vMx}, v{vMx} row_ror:8 row_mask:0xf bank_mask:0xf")
        A(f"v_mov_b32 v{vTm}, v{vMx}")
        A(f"v_permlane16_swap_b32 v{vTm}, v{vMx}")
        A(f"v_max_f32 v{vMx}, v{vTm}, v{vMx}")
        A(f"v_mov_b32 v{vTm}, v{vMx}")
        A(f"v_permlane32_swap_b32 v{vTm}, v{vMx}")
        A(f"v_max_f32 v{vMx}, v{vTm}, v{vMx}")
        A(f"v_mul_f32 v{vMx}, s{sNC}, v{vMx}")
    def xmov():
        for e in range(4):
            for t in range(4):
                src = Plo if e % 2 == 0 else Phi
                dst = X + 2 * t + (e >> 1)
                rot = (4 * (e - t)) % 16
                ctl = "quad_perm:[0,1,2,3]" if rot == 0 else f"row_ror:{rot}"
                A(f"v_mov_b32_dpp v{dst}, v{src} {ctl} row_mask:0xf bank_mask:{1<<e:#x}")
    def bar(level, b):
        if level == 2 or (level == 1 and b == 0):
            A("s_barrier")

    def run_phase():
        Cm("---- K run: scores of R blocks collect in v[ZA:ZA+R-1]")
        A(f"s_mov_b32 s{sN}, {R//4}")
        st = len(o)
        Lb("L_kl")
        A(f"s_add_u32 s{sNext}, s{sNext}, 0x10000")
        A(f"s_cmp_lg_u32 s{sN}, 1")
        A("s_cbranch_scc1 L_kl1")
        A(f"s_mov_b32 s{sNext}, s{sRun}")
        A(f"s_mov_b64 s[{WA}:{WA+1}], s[8:9]")
        A(f"s_mov_b64 s[{WB}:{WB+1}], s[8:9]")
        A(f"v_mov_b32 v{vCA}, v{vVo}")
        A(f"v_mov_b32 v{vCB}, v{vVo}")
        Lb("L_kl1")
        A(f"s_add_u32 s{sT0}, s{sLead}, s{sN}")
        A(f"s_cmp_lg_u32 s{sT0}, {R//4 - sigit}")
        A("s_cbranch_scc1 L_kl2")
        A(f"s_mov_b32 s{sT0}, s{sBit}")
        A("s_waitcnt lgkmcnt(0)")
        A(f"s_atomic_or s{sT0}, s[{sDbg}:{sDbg+1}], 0")
        Lb("L_kl2")
        seto()
        for b in range(4):
            A("s_waitcnt vmcnt(12)")
            qk(b)
            bar(lb, b)
            refill(b)
            if b == 0:
                zshift()
            scores(ZA + R - 4 + b)
        A(f"s_sub_u32 s{sN}, s{sN}, 1")
        A(f"s_cmp_lg_u32 s{sN}, 0")
        A("s_cbranch_scc1 L_kl")
        assert check_seam(o[st:])
        Cm("---- maximum of the run")
        A(f"buffer_load_dword v{vFlag}, v{vZero}, s[20:23], s{sFlagOff} offen sc1")
        A(f"v_max_f32 v{vD}, v{ZA}, v{ZA+1}")
        for j in range(2, R, 2):
            A(f"v_max3_f32 v{vD}, v{vD}, v{ZA+j}, v{ZA+j+1}")
        wavemax(vD)
        A(f"v_min_f32 v{vNM}, v{vMx}, v{vNM}")
        Cm("---- V run")
        A(f"s_mov_b32 s{sN}, {R//4}")
        st = len(o)
        Lb("L_vl")
        A(f"s_add_u32 s{sNext}, s{sNext}, 0x10000")
        seto()
        A(f"s_cmp_lg_u32 s{sN}, 1")
        A("s_cbranch_scc1 L_vl1")
        A(f"s_mov_b64 s[{WA}:{WA+1}], s[4:5]")
        A(f"v_mov_b32 v{vCA}, v{vKo}")
        A(f"s_mov_b32 s{sO}, s{sOff}")
        A(f"s_mov_b32 s{sO+1}, s{sOff}")
        A(f"s_add_u32 s{sO+2}, s{sOff}, 0x4000")
        A(f"s_add_u32 s{sO+3}, s{sOff}, 0x4000")
        Lb("L_vl1")
        for b in range(4):
            A(f"v_fma_f32 v{P}, v{ZA+b}, s{sC}, v{vNM}")
            A(f"v_exp_f32 v{P}, v{P}")
            A(f"v_cvt_pk_bf16_f32 v{Plo}, v{P}, 0")
            A(f"v_cvt_pk_bf16_f32 v{Phi}, 0, v{P}")
            A(f"v_add_f32 v{vL}, v{vL}, v{P}")
            xmov()
            A("s_waitcnt vmcnt(12)")
            pv(b)
            bar(lb, b)
            refill(b)
        zshift()
        A(f"s_sub_u32 s{sN}, s{sN}, 1")
        A(f"s_cmp_lg_u32 s{sN}, 0")
        A("s_cbranch_scc1 L_vl")
        assert check_seam(o[st:])

    def step(b):
        if b == 0:
            A(f"ds_read_b64 v[{vRing}:{vRing+1}], v{vR} offset:128")
        else:
            A(f"s_mov_b32 s{sEl}, 2")
            A(f"s_add_u32 s{sT0}, s{sI}, 2")
            A(f"s_cmp_lt_u32 s{sT0}, s{sNS}")
            A("s_cbranch_scc1 L_noel")
            A(f"s_cmp_ge_u32 s{sU}, {NUN}")
            A("s_cbranch_scc1 L_noel")
            A(f"s_mov_b32 s{sEl}, 0")
            A("s_mov_b64 exec, 1")
            A(f"ds_add_rtn_u32 v{vE}, v{vR}, v{vOne}")
            A("s_mov_b64 exec, -1")
            Lb("L_noel")
        A("s_waitcnt vmcnt(12)")
        qk(2 * b)
        if b == 0:
            A(f"s_add_u32 s{sU}, s{sU}, 4")
            A(f"s_add_u32 s{sT0}, s{sI}, 1")
            A(f"s_cmp_ge_u32 s{sT0}, s{sNS}")
            A("s_cbranch_scc1 L_dyn")
            Lb("L_unit")
            unit_off()
        else:
            A(f"s_add_u32 s{sOff}, s{sOff}, 0x4000")
        bar(ub, b)
        load4(2 * b, vKo, 4, sOff, fk)
        if b == 1:
            A(f"s_cmp_lg_u32 s{sEl}, 0")
            A("s_cbranch_scc1 L_notk")
            A("s_waitcnt lgkmcnt(0)")
            A(f"v_readfirstlane_b32 s{sT0}, v{vE}")
            A(f"s_cmp_lg_u32 s{sT0}, 0")
            A("s_cbranch_scc1 L_notk")
            A(f"s_add_u32 s{sT0}, s{sI}, 2")
            A(f"s_cmp_eq_u32 s{sT0}, s{sNS}")
            A("s_cbranch_scc1 L_chk")
            Lb("L_tk")
            A(f"s_mov_b32 s{sEl}, 1")
            A(f"s_mov_b64 s[{sTk}:{sTk+1}], 4")
            A(f"s_atomic_add_x2 s[{sTk}:{sTk+1}], s[{sCnt}:{sCnt+1}], 0 glc")
            Lb("L_notk")
        scores(Z)
        wavemax(Z)
        A(f"v_min_f32 v{vMx}, v{vMx}, v{vNM}")
        A(f"v_sub_f32 v{vD}, v{vMx}, v{vNM}")
        A(f"v_fma_f32 v{P}, v{Z}, s{sC}, v{vMx}")
        A(f"v_exp_f32 v{vAl}, v{vD}")
        A(f"v_exp_f32 v{P}, v{P}")
        A(f"v_mov_b32 v{vNM}, v{vMx}")
        A(f"v_cvt_pk_bf16_f32 v{Plo}, v{P}, 0")
        A(f"v_cvt_pk_bf16_f32 v{Phi}, 0, v{P}")
        A(f"v_fma_f32 v{vL}, v{vL}, v{vAl}, v{P}")
        for j in range(4):
            A(f"v_mul_f32_dpp v{D1+j}, v{vAl}, v{D1+j} quad_perm:[{j},{j},{j},{j}] row_mask:0xf bank_mask:0xf")
            A(f"v_mul_f32_dpp v{D2+j}, v{vAl}, v{D2+j} quad_perm:[{j},{j},{j},{j}] row_mask:0xf bank_mask:0xf")
        xmov()
        A("s_waitcnt vmcnt(12)")
        pv(2 * b + 1)
        bar(2 if ub == 2 else 0, b)
        load4(2 * b + 1, vVo, 8, sOff, fv)

    lds = REQ + 256
    hdr = [f"; @launch grid=(256,1,1) block=(256,1,1) lds={lds}",
           '.amdgcn_target "amdgcn-amd-amdhsa--gfx950"', ".text", f".globl {KN}", ".p2align 8",
           f".type {KN},@function", f"{KN}:"]
    A("s_load_dwordx2 s[4:5], s[0:1], 8")
    A("s_load_dwordx2 s[12:13], s[0:1], 0")
    A("s_load_dwordx2 s[8:9], s[0:1], 16")
    A("s_load_dwordx2 s[24:25], s[0:1], 40")
    A("s_load_dwordx2 s[20:21], s[0:1], 32")
    A("s_load_dwordx2 s[16:17], s[0:1], 24")
    stamp(0)
    Cm("surplus workgroups exit")
    A("s_cmp_ge_u32 s2, 256")
    A("s_cbranch_scc1 L_end")
    A(f"v_lshrrev_b32 v{vT0}, 6, v0")
    A(f"v_and_b32 v{vLane}, 63, v0")
    A(f"v_readfirstlane_b32 s{sW}, v{vT0}")
    Cm("role and (b,hkv) index")
    A(f"s_and_b32 s{sRole}, s2, 1")
    A(f"s_mul_i32 s{sT0}, s{sRole}, {px}")
    A(f"s_xor_b32 s{sBH}, s2, s{sT0}")
    A(f"s_lshr_b32 s{sBH}, s{sBH}, 1")
    Cm("lane offsets inside a 1-KiB K tile, a V tile and the Q block")
    A(f"v_bfe_u32 v{vT0}, v{vLane}, 2, 2")
    A(f"v_and_b32 v{vT1}, 48, v{vLane}")
    A(f"v_and_b32 v{vT2}, 3, v{vLane}")
    A(f"v_lshlrev_b32 v{vT1}, 2, v{vT1}")
    A(f"v_lshl_add_u32 v{vKo}, v{vT0}, 8, v{vT1}")
    A(f"v_lshl_add_u32 v{vKo}, v{vT2}, 4, v{vKo}")
    A(f"v_lshl_add_u32 v{vTm}, v{vT2}, 8, v{vT1}")
    A(f"v_lshl_add_u32 v{vTm}, v{vT0}, 4, v{vTm}")
    A(f"v_mov_b32 v{vCA}, v{vKo}")
    A(f"v_mov_b32 v{vCB}, v{vKo}")
    A(f"s_mul_i32 s{sRun}, s{sRole}, {4*R*4096}")
    A(f"s_lshl_b32 s{sT0}, s{sW}, 12")
    A(f"s_add_u32 s{sRun}, s{sRun}, s{sT0}")
    A(f"s_mov_b32 s{sNext}, s{sRun}")
    seto()
    A(f"s_mov_b32 s{WA+2}, 0x100000"); A(f"s_mov_b32 s{WA+3}, 0x20000")
    A(f"s_mov_b32 s{WB+2}, 0x100000"); A(f"s_mov_b32 s{WB+3}, 0x20000")
    A("s_mov_b32 s14, 0x20000"); A("s_mov_b32 s15, 0x20000")
    A(f"s_lshl_b32 s{sQO}, s{sBH}, 10")
    A(f"s_lshl_b32 s{sT0}, s{sBH}, 20")
    A("s_waitcnt lgkmcnt(0)")
    A(f"s_add_u32 s4, s4, s{sT0}"); A("s_addc_u32 s5, s5, 0")
    A(f"s_mov_b64 s[{WA}:{WA+1}], s[4:5]")
    A(f"s_mov_b64 s[{WB}:{WB+1}], s[4:5]")
    Cm("first four K blocks; the barriers keep the four waves' requests in address order")
    refill(0)
    A(f"buffer_load_dwordx4 v[{Q}:{Q+3}], v{vTm}, s[12:15], s{sQO} offen")
    A(f"s_add_u32 s8, s8, s{sT0}"); A("s_addc_u32 s9, s9, 0")
    Cm("clear this wave's quarter of the request / ticket words")
    A(f"v_mov_b32 v{vZero}, 0")
    A(f"v_lshlrev_b32 v{vR}, 2, v{vLane}")
    A(f"s_lshl_b32 s{sT1}, s{sW}, 6")
    A(f"s_add_u32 s{sT1}, s{sT1}, {REQ}")
    A(f"v_add_u32 v{vR}, s{sT1}, v{vR}")
    A("s_mov_b64 exec, 0xffff")
    A(f"ds_write_b32 v{vR}, v{vZero}")
    A("s_mov_b64 exec, -1")
    for b in (1, 2, 3):
        if b == 3:
            A("s_waitcnt lgkmcnt(0)")
        if pb or b == 3:
            A("s_barrier")
        refill(b)
    Cm("remaining descriptors, ticket counter and flag addresses")
    A(f"v_lshlrev_b32 v{vVo}, 4, v{vLane}")
    A("s_mov_b32 s6, 0x100000"); A("s_mov_b32 s7, 0x20000")
    A("s_mov_b32 s10, 0x100000"); A("s_mov_b32 s11, 0x20000")
    A("s_mov_b32 s18, 0x20000"); A("s_mov_b32 s19, 0x20000")
    A("s_mov_b32 s22, 256"); A("s_mov_b32 s23, 0x20000")
    A("s_mov_b32 s26, 0x20000000"); A("s_mov_b32 s27, 0x20000")
    A(f"s_lshl_b32 s{sSlot}, s{sBH}, 12")
    A(f"s_mul_i32 s{sT0}, s{sBH}, {cstride}")
    A(f"s_add_u32 s{sT0}, s{sT0}, 0x400000")
    A(f"s_add_u32 s{sCnt}, s24, s{sT0}"); A(f"s_addc_u32 s{sCnt+1}, s25, 0")
    A(f"s_and_b32 s{sT0}, s{sBH}, 63")
    A(f"s_lshl_b32 s{sFlagOff}, s{sT0}, 2")
    A(f"s_lshr_b32 s{sT0}, s{sBH}, 6")
    A(f"s_lshl_b32 s{sBit}, 1, s{sT0}")
    A(f"s_add_u32 s{sDbg}, s20, s{sFlagOff}"); A(f"s_addc_u32 s{sDbg+1}, s21, 0")
    A(f"v_mov_b32 v{vR}, {REQ}")
    A(f"v_mov_b32 v{vOne}, 1")
    Cm("sLead == 0 only in wave 0 of the publishing workgroup: reset the counter, advance the epoch")
    A(f"s_xor_b32 s{sLead}, s{sRole}, {1 - cons}")
    A(f"s_or_b32 s{sLead}, s{sLead}, s{sW}")
    A(f"s_lshl_b32 s{sLead}, s{sLead}, 8")
    A(f"s_cbranch_scc1 L_nosig")
    A(f"s_mov_b32 s{sTk}, {POOL}")
    A(f"s_mov_b32 s{sTag}, 1")
    A(f"s_atomic_swap s{sTk}, s[{sCnt}:{sCnt+1}], 0 glc")
    A(f"s_atomic_add s{sTag}, s[{sCnt}:{sCnt+1}], 4 glc")
    Lb("L_nosig")
    A(f"s_mul_i32 s{sU}, s{sRole}, {4*NS0}")
    A(f"s_add_u32 s{sU}, s{sU}, s{sW}")
    unit_off()
    A(f"s_cmp_eq_u32 s{sRole}, 0")
    A(f"s_cselect_b32 s{sNS}, {NS0}, {NS1}")
    A(f"s_mov_b32 s{sC}, {f2u(C):#x}")
    A(f"s_mov_b32 s{sNC}, {f2u(-C):#x}")
    A(f"s_mov_b32 s{sI}, 0")
    A(f"v_mov_b32 v{vNM}, {BIG:#x}")
    A(f"v_mov_b32 v{vL}, 0")
    for j in range(4):
        A(f"v_mov_b32 v{D1+j}, 0"); A(f"v_mov_b32 v{D2+j}, 0")
    for j in range(8):
        A(f"v_mov_b32 v{X+j}, 0")
    if stamps:
        A("s_waitcnt vmcnt(12)")
        stamp(1)
    run_phase()
    Cm("---- unit loop: two 16-key blocks per iteration, online softmax")
    start = len(o)
    Lb("L_iter")
    step(0); step(1)
    A(f"s_add_u32 s{sI}, s{sI}, 1")
    A(f"s_cmp_lt_u32 s{sU}, {NUN}")
    A("s_cbranch_scc1 L_iter")
    assert check_seam([l for l in o[start:]])
    stamp(2)
    Cm("---- wave state -> LDS, combine the four waves (wave = head, lane = two dims)")
    A(f"v_add_f32_dpp v{vL}, v{vL}, v{vL} row_ror:4 row_mask:0xf bank_mask:0xf")
    A(f"v_and_b32 v{vT0}, 15, v{vLane}")
    A(f"v_lshrrev_b32 v{vT1}, 4, v{vLane}")
    A(f"v_add_f32_dpp v{vL}, v{vL}, v{vL} row_ror:8 row_mask:0xf bank_mask:0xf")
    A(f"v_lshlrev_b32 v{vT0}, 5, v{vT0}")
    A(f"v_lshl_add_u32 v{vT0}, v{vT1}, 2, v{vT0}")
    A(f"s_lshl_b32 s{sT0}, s{sW}, 11")
    A(f"v_mov_b32 v{vTm}, v{vL}")
    A(f"v_add_u32 v{vT0}, s{sT0}, v{vT0}")
    A(f"s_lshl_b32 s{sT0}, s{sW}, 5")
    A(f"v_permlane16_swap_b32 v{vTm}, v{vL}")
    for j in range(4):
        A(f"ds_write_b32 v{vT0}, v{D1+j} offset:{j*512}")
        A(f"ds_write_b32 v{vT0}, v{D2+j} offset:{j*512+16}")
    A(f"v_add_f32 v{vL}, v{vTm}, v{vL}")
    A(f"s_add_u32 s{sT0}, s{sT0}, {W*2048}")
    A(f"v_mov_b32 v{vTm}, v{vL}")
    A(f"v_lshlrev_b32 v{vT1}, 3, v{vT2}")
    A(f"v_add_u32 v{vT1}, s{sT0}, v{vT1}")
    A(f"v_permlane32_swap_b32 v{vTm}, v{vL}")
    A(f"v_add_f32 v{vL}, v{vTm}, v{vL}")
    A("s_mov_b64 exec, 15")
    A(f"ds_write_b64 v{vT1}, v[{vNM}:{vNM+1}]")
    A("s_mov_b64 exec, -1")
    A(f"s_lshl_b32 s{sT0}, s{sW}, 9")
    A(f"v_lshlrev_b32 v{vT0}, 3, v{vLane}")
    A(f"v_add_u32 v{vT0}, s{sT0}, v{vT0}")
    A(f"s_lshl_b32 s{sT0}, s{sW}, 3")
    A(f"s_add_u32 s{sT0}, s{sT0}, {W*2048}")
    A(f"v_mov_b32 v{vT1}, s{sT0}")
    A(f"v_lshlrev_b32 v{vT2}, 4, v0")
    A(f"v_mov_b32 v{vD}, {TINY:#x}")
    H = 36
    A(f"s_cmp_lg_u32 s{sRole}, {cons}")
    A("s_cbranch_scc1 L_nopre")
    A(f"buffer_load_dwordx4 v[{H}:{H+3}], v{vT2}, s[24:27], s{sSlot} offen sc1")
    Lb("L_nopre")
    A("s_waitcnt lgkmcnt(0)")
    A("s_barrier")
    O = S; ML = S + 8
    for w in range(W):
        A(f"ds_read_b64 v[{ML+2*w}:{ML+2*w+1}], v{vT1} offset:{w*32}")
    for w in range(W):
        A(f"ds_read_b64 v[{O+2*w}:{O+2*w+1}], v{vT0} offset:{w*2048}")
    G = 40
    A(f"s_waitcnt lgkmcnt({W})")
    A(f"v_min_f32 v{vMx}, v{ML}, v{ML+2}")
    A(f"v_min3_f32 v{vMx}, v{vMx}, v{ML+4}, v{ML+6}")
    for w in range(W): A(f"v_sub_f32 v{ML+2*w}, v{vMx}, v{ML+2*w}")
    for w in range(W): A(f"v_exp_f32 v{ML+2*w}, v{ML+2*w}")
    A(f"v_fma_f32 v{vAl}, v{ML}, v{ML+1}, v{vD}")
    for w in range(1, W): A(f"v_fma_f32 v{vAl}, v{ML+2*w}, v{ML+2*w+1}, v{vAl}")
    A(f"v_log_f32 v{G+2}, v{vAl}")
    A(f"v_rcp_f32 v{vAl}, v{vAl}")
    A("s_waitcnt lgkmcnt(0)")
    A(f"v_mul_f32 v{G}, v{ML}, v{O}")
    A(f"v_mul_f32 v{G+1}, v{ML}, v{O+1}")
    for w in range(1, W):
        A(f"v_fma_f32 v{G}, v{ML+2*w}, v{O+2*w}, v{G}")
        A(f"v_fma_f32 v{G+1}, v{ML+2*w}, v{O+2*w+1}, v{G+1}")
    A(f"v_sub_f32 v{G+2}, v{G+2}, v{vMx}")
    A(f"v_mov_b32 v{G+3}, s{sTag}")
    A(f"v_mul_f32 v{G}, v{vAl}, v{G}")
    A(f"v_mul_f32 v{G+1}, v{vAl}, v{G+1}")
    A(f"s_cmp_eq_u32 s{sRole}, {cons}")
    A("s_cbranch_scc1 L_consumer")
    Cm("publishing workgroup: granule {o0, o1, log2 of the total weight, epoch}")
    A(f"buffer_store_dwordx4 v[{G}:{G+3}], v{vT2}, s[24:27], s{sSlot} offen sc1")
    A("s_branch L_fin")
    Cm("---- ticket of this round: own atomic, or the words another wave shared")
    Lb("L_dyn")
    A("s_waitcnt lgkmcnt(0)")
    A(f"s_cmp_lg_u32 s{sEl}, 1")
    A("s_cbranch_scc1 L_dyn1")
    A(f"v_mov_b32 v{vRing}, s{sTk}")
    A(f"v_mov_b32 v{vRing+1}, s{sTag}")
    A("s_mov_b64 exec, 1")
    A(f"ds_write_b64 v{vR}, v[{vRing}:{vRing+1}] offset:128")
    A("s_mov_b64 exec, -1")
    A("s_branch L_dyn3")
    Lb("L_dyn1")
    A(f"s_mov_b32 s{sT1}, 0x1000000")
    Lb("L_dyn2")
    A(f"v_readfirstlane_b32 s{sTk}, v{vRing}")
    A(f"v_readfirstlane_b32 s{sTag}, v{vRing+1}")
    A(f"s_cmp_lg_u32 s{sTk}, 0")
    A("s_cbranch_scc1 L_dyn3")
    A(f"s_mov_b32 s{sTk}, 0x1000")
    A(f"s_sub_u32 s{sT1}, s{sT1}, 1")
    A("s_cbranch_scc1 L_dyn3")
    A(f"ds_read_b64 v[{vRing}:{vRing+1}], v{vR} offset:128")
    A("s_waitcnt lgkmcnt(0)")
    A("s_branch L_dyn2")
    Lb("L_dyn3")
    A(f"s_add_u32 s{sU}, s{sTk}, s{sW}")
    A(f"v_add_u32 v{vR}, 8, v{vR}")
    A("s_branch L_unit")
    Cm("---- first ticket of the workgroup: wait until counter and epoch are initialised")
    Lb("L_chk")
    A(f"s_mov_b32 s{sT1}, 0x100000")
    Lb("L_chk1")
    A(f"v_readfirstlane_b32 s{sT0}, v{vFlag}")
    A(f"s_and_b32 s{sT0}, s{sT0}, s{sBit}")
    A("s_cbranch_scc1 L_tk")
    A(f"s_sub_u32 s{sT1}, s{sT1}, 1")
    A("s_cbranch_scc1 L_tk")
    A("s_sleep 8")
    A(f"buffer_load_dword v{vFlag}, v{vZero}, s[20:23], s{sFlagOff} offen sc1")
    A("s_waitcnt vmcnt(0)")
    A("s_branch L_chk1")
    Cm("---- merging workgroup: wait for the partner's granules, merge, store bf16")
    Lb("L_poll")
    A(f"buffer_load_dwordx4 v[{H}:{H+3}], v{vT2}, s[24:27], s{sSlot} offen sc1")
    Lb("L_consumer")
    A(f"s_sub_u32 s{sI}, s{sI}, 0x1000")
    A("s_waitcnt vmcnt(0)")
    A(f"v_cmp_ne_u32 vcc, s{sTag}, v{H+3}")
    A(f"s_cmp_lt_u32 s{sI}, 0x1000")
    A("s_cbranch_scc1 L_got")
    A("s_cbranch_vccnz L_poll")
    Lb("L_got")
    A(f"v_sub_f32 v{vMx}, v{G+2}, v{H+2}")
    A(f"v_exp_f32 v{vMx}, v{vMx}")
    A(f"v_sub_f32 v{H}, v{H}, v{G}")
    A(f"v_sub_f32 v{H+1}, v{H+1}, v{G+1}")
    A(f"v_lshlrev_b32 v{vT0}, 2, v0")
    A(f"v_add_f32 v{vMx}, 1.0, v{vMx}")
    A(f"v_rcp_f32 v{vMx}, v{vMx}")
    A(f"v_fma_f32 v{G}, v{vMx}, v{H}, v{G}")
    A(f"v_fma_f32 v{G+1}, v{vMx}, v{H+1}, v{G+1}")
    A(f"v_cvt_pk_bf16_f32 v{G}, v{G}, v{G+1}")
    A(f"buffer_store_dword v{G}, v{vT0}, s[16:19], s{sQO} offen")
    Lb("L_fin")
    if stamps:
        A("s_waitcnt vmcnt(0)")
        stamp(3)
        A("s_waitcnt lgkmcnt(0)")
        for i in range(8):
            A(f"v_mov_b32 v{S+i}, s{ST+i}")
        A(f"v_mov_b32 v{S+1}, s{sI}")
        A(f"s_lshl_b32 s{sT0}, s2, 2")
        A(f"s_add_u32 s{sT0}, s{sT0}, s{sW}")
        A(f"s_lshl_b32 s{sT0}, s{sT0}, 5")
        A(f"s_add_u32 s{sT0}, s{sT0}, 0x10000000")
        A("s_mov_b64 exec, 1")
        A(f"buffer_store_dwordx4 v[{S}:{S+3}], v{vZero}, s[24:27], s{sT0} offen")
        A(f"buffer_store_dwordx4 v[{S+4}:{S+7}], v{vZero}, s[24:27], s{sT0} offen offset:16")
    Lb("L_end")
    A("s_endpgm")
    body = fix_hazards(o)
    tail = ['.section .rodata,"a"', ".p2align 6", f".amdhsa_kernel {KN}",
            f"  .amdhsa_next_free_vgpr {NV + 64}", "  .amdhsa_next_free_sgpr 80", f"  .amdhsa_accum_offset {NV}",
            "  .amdhsa_group_segment_fixed_size 0", "  .amdhsa_kernarg_size 48", "  .amdhsa_user_sgpr_count 2",
            "  .amdhsa_user_sgpr_kernarg_segment_ptr 1", "  .amdhsa_system_sgpr_workgroup_id_x 1",
            "  .amdhsa_float_denorm_mode_32 3", ".end_amdhsa_kernel"]
    return "\n".join(hdr + body + tail) + "\n"

if __name__ == "__main__":
    names = []
    for spec in sys.argv[1:]:
        kw = {}
        for p in spec.split(","):
            k, v = p.split("=")
            kw[k] = int(v)
        fn = "k7_" + spec.replace(",", "-").replace("=", "") + ".s"
        open(fn, "w").write(gen(**kw))
        names.append(fn)
    print(" ".join(names))
```

```python
import sys, struct, math
from asmlib import fix_hazards, check_seam
KN = "standalone__gqa_softmax__sampling_kernel"

def f2u(x):
    return struct.unpack("<I", struct.pack("<f", x))[0]

def gen(R=24, NS0=2, NS1=2, stamps=0, cstride=4352, px=5, cons=1, pb=1, lb=2, ub=0, sigit=2, roff=0, NSG=0):
    W = 4; NL = 4
    fk = fv = "nt"
    assert ((256 - 8 * R) // 2 - 4 * (NS0 + NS1)) // 4 + 1 <= 16
    assert R % 4 == 0 and NS0 >= 2 and NS1 >= 2 and R // 4 > sigit
    UB = 8 * R * 4096
    US = (256 - 8 * R - NSG) // 2
    NUN = US + NSG
    assert US % 4 == 0 and US >= 4 * (NS0 + NS1) and (NUN - 4 * (NS0 + NS1)) // 4 + 1 <= 16
    POOL = 4 * (NS0 + NS1)
    C = 128 ** -0.5 * math.log2(math.e)
    BIG = f2u(3.0e38)
    TINY = f2u(1e-37)
    o = []
    A = lambda s: o.append("  " + s)
    Lb = lambda s: o.append(s + ":")
    Cm = lambda s: o.append("  ; " + s)
    vKo, vVo, vR, vOne = 1, 2, 3, 4
    vT0, vT1, vT2 = 5, 6, 7
    Q = 8
    D1, D2 = 12, 16
    vNM, vL, vAl, vMx, vTm, vD = 20, 21, 22, 23, 24, 25
    vLane, vZero, vFlag, vE = 26, 27, 28, 29
    vRing = 30
    Z, P, Plo, Phi = 32, 33, 34, 35
    X = 36
    S = 44
    vCA, vCB = 60, 61
    ZA = 64
    NV = 64 + R
    sW, sBH, sRole = 3, 28, 29
    sU, sEl, sOff, sI = 30, 31, 32, 33
    sTk, sTag = 34, 35
    sT0, sT1, sC, sNC, sNS, sLead = 36, 37, 38, 39, 40, 41
    sCnt, sDbg = 42, 44
    sSlot, sFlagOff, sBit, sQO = 46, 47, 48, 49
    ST = 52
    sOff1, sSg, sSgN = 50, 51, 75
    WA, WB, sO, sRun, sNext, sN = 60, 64, 68, 72, 73, 74
    REQ = W * 2048 + W * 32
    def stamp(i):
        if stamps:
            A(f"s_memrealtime s[{ST+2*i}:{ST+2*i+1}]")
    def load4(buf, vo, srd, so, fl):
        for t in range(4):
            r = 16 * buf + 4 * t
            A(f"buffer_load_dwordx4 a[{r}:{r+3}], v{vo}, s[{srd}:{srd+3}], s{so} offen offset:{t*1024} {fl}")
    def refill(b):
        load4(b, vCA if b % 2 == 0 else vCB, WA if b % 2 == 0 else WB, sO + b, fk)
    def unit_off():
        A(f"s_and_b32 s{sT0}, s{sU}, 3")
        A(f"s_andn2_b32 s{sT1}, s{sU}, 3")
        A(f"s_lshl1_add_u32 s{sT0}, s{sT1}, s{sT0}")
        A(f"s_lshl_b32 s{sOff}, s{sT0}, 12")
        A(f"s_add_u32 s{sOff}, s{sOff}, {UB}")
    def seto():
        for b in range(4):
            A(f"s_add_u32 s{sO+b}, s{sNext}, {b*0x4000}")
    def zshift():
        for j in range(R - 4):
            A(f"v_mov_b32 v{ZA+j}, v{ZA+j+4}")
    def qk(buf):
        for t in range(4):
            r = 16 * buf + 4 * t
            A(f"v_mfma_f32_16x16x32_bf16 v[{S+4*t}:{S+4*t+3}], a[{r}:{r+3}], v[{Q}:{Q+3}], 0")
    def pv(buf):
        for t in range(4):
            r = 16 * buf + 4 * t
            A(f"v_mfma_f32_16x16x16_bf16 v[{D1}:{D1+3}], v[{X+2*t}:{X+2*t+1}], a[{r}:{r+1}], v[{D1}:{D1+3}]")
            A(f"v_mfma_f32_16x16x16_bf16 v[{D2}:{D2+3}], v[{X+2*t}:{X+2*t+1}], a[{r+2}:{r+3}], v[{D2}:{D2+3}]")
    def scores(dst):
        for t in range(4):
            r = lambda j: S + 4 * t + ((t + j) & 3)
            A(f"v_add_f32_dpp v{r(0)}, v{r(1)}, v{r(0)} row_ror:12 row_mask:0xf bank_mask:0xf")
            A(f"v_add_f32_dpp v{r(2)}, v{r(3)}, v{r(2)} row_ror:12 row_mask:0xf bank_mask:0xf")
        for t in range(4):
            r = lambda j: S + 4 * t + ((t + j) & 3)
            A(f"v_add_f32_dpp v{dst}, v{r(2)}, v{r(0)} row_ror:8 row_mask:0xf bank_mask:{1<<t:#x}")
    def wavemax(src):
        A(f"v_max_f32_dpp v{vMx}, v{src}, v{src} row_ror:4 row_mask:0xf bank_mask:0xf")
        A(f"v_max_f32_dpp v{vMx}, v{vMx}, v{vMx} row_ror:8 row_mask:0xf bank_mask:0xf")
        A(f"v_mov_b32 v{vTm}, v{vMx}")
        A(f"v_permlane16_swap_b32 v{vTm}, v{vMx}")
        A(f"v_max_f32 v{vMx}, v{vTm}, v{vMx}")
        A(f"v_mov_b32 v{vTm}, v{vMx}")
        A(f"v_permlane32_swap_b32 v{vTm}, v{vMx}")
        A(f"v_max_f32 v{vMx}, v{vTm}, v{vMx}")
        A(f"v_mul_f32 v{vMx}, s{sNC}, v{vMx}")
    def xmov():
        for e in range(4):
            for t in range(4):
                src = Plo if e % 2 == 0 else Phi
                dst = X + 2 * t + (e >> 1)
                rot = (4 * (e - t)) % 16
                ctl = "quad_perm:[0,1,2,3]" if rot == 0 else f"row_ror:{rot}"
                A(f"v_mov_b32_dpp v{dst}, v{src} {ctl} row_mask:0xf bank_mask:{1<<e:#x}")
    def bar(level, b):
        if level == 2 or (level == 1 and b == 0):
            A("s_barrier")

    def run_phase():
        Cm("---- K run: scores of R blocks collect in v[ZA:ZA+R-1]")
        A(f"s_mov_b32 s{sN}, {R//4}")
        st = len(o)
        Lb("L_kl")
        A(f"s_add_u32 s{sNext}, s{sNext}, 0x10000")
        A(f"s_cmp_lg_u32 s{sN}, 1")
        A("s_cbranch_scc1 L_kl1")
        A(f"s_mov_b32 s{sNext}, s{sRun}")
        A(f"s_mov_b64 s[{WA}:{WA+1}], s[8:9]")
        A(f"s_mov_b64 s[{WB}:{WB+1}], s[8:9]")
        A(f"v_mov_b32 v{vCA}, v{vVo}")
        A(f"v_mov_b32 v{vCB}, v{vVo}")
        Lb("L_kl1")
        A(f"s_add_u32 s{sT0}, s{sLead}, s{sN}")
        A(f"s_cmp_lg_u32 s{sT0}, {R//4 - sigit}")
        A("s_cbranch_scc1 L_kl2")
        A(f"s_mov_b32 s{sT0}, s{sBit}")
        A("s_waitcnt lgkmcnt(0)")
        A(f"s_atomic_or s{sT0}, s[{sDbg}:{sDbg+1}], 0")
        Lb("L_kl2")
        seto()
        for b in range(4):
            A("s_waitcnt vmcnt(12)")
            qk(b)
            bar(lb, b)
            refill(b)
            if b == 0:
                zshift()
            scores(ZA + R - 4 + b)
        A(f"s_sub_u32 s{sN}, s{sN}, 1")
        A(f"s_cmp_lg_u32 s{sN}, 0")
        A("s_cbranch_scc1 L_kl")
        assert check_seam(o[st:])
        Cm("---- maximum of the run")
        A(f"buffer_load_dword v{vFlag}, v{vZero}, s[20:23], s{sFlagOff} offen sc1")
        A(f"v_max_f32 v{vD}, v{ZA}, v{ZA+1}")
        for j in range(2, R, 2):
            A(f"v_max3_f32 v{vD}, v{vD}, v{ZA+j}, v{ZA+j+1}")
        wavemax(vD)
        A(f"v_min_f32 v{vNM}, v{vMx}, v{vNM}")
        Cm("---- V run")
        A(f"s_mov_b32 s{sN}, {R//4}")
        st = len(o)
        Lb("L_vl")
        A(f"s_add_u32 s{sNext}, s{sNext}, 0x10000")
        seto()
        A(f"s_cmp_lg_u32 s{sN}, 1")
        A("s_cbranch_scc1 L_vl1")
        A(f"s_mov_b64 s[{WA}:{WA+1}], s[4:5]")
        A(f"v_mov_b32 v{vCA}, v{vKo}")
        A(f"s_mov_b32 s{sO}, s{sOff}")
        A(f"s_mov_b32 s{sO+1}, s{sOff}")
        A(f"s_add_u32 s{sO+2}, s{sOff}, 0x4000")
        A(f"s_add_u32 s{sO+3}, s{sOff}, 0x4000")
        Lb("L_vl1")
        for b in range(4):
            A(f"v_fma_f32 v{P}, v{ZA+b}, s{sC}, v{vNM}")
            A(f"v_exp_f32 v{P}, v{P}")
            A(f"v_cvt_pk_bf16_f32 v{Plo}, v{P}, 0")
            A(f"v_cvt_pk_bf16_f32 v{Phi}, 0, v{P}")
            A(f"v_add_f32 v{vL}, v{vL}, v{P}")
            xmov()
            A("s_waitcnt vmcnt(12)")
            pv(b)
            bar(lb, b)
            refill(b)
        zshift()
        A(f"s_sub_u32 s{sN}, s{sN}, 1")
        A(f"s_cmp_lg_u32 s{sN}, 0")
        A("s_cbranch_scc1 L_vl")
        assert check_seam(o[st:])

    def step(b):
        if b == 0:
            A(f"ds_read_b64 v[{vRing}:{vRing+1}], v{vR} offset:128")
        else:
            A(f"s_mov_b32 s{sEl}, 2")
            A(f"s_add_u32 s{sT0}, s{sI}, 2")
            A(f"s_cmp_lt_u32 s{sT0}, s{sNS}")
            A("s_cbranch_scc1 L_noel")
            A(f"s_cmp_ge_u32 s{sU}, {NUN}")
            A("s_cbranch_scc1 L_noel")
            A(f"s_mov_b32 s{sEl}, 0")
            A("s_mov_b64 exec, 1")
            A(f"ds_add_rtn_u32 v{vE}, v{vR}, v{vOne}")
            A("s_mov_b64 exec, -1")
            Lb("L_noel")
            if NSG:
                A(f"s_cmp_lg_u32 s{sSg}, 0")
                A("s_cbranch_scc1 L_skip1")
        A("s_waitcnt vmcnt(12)")
        qk(2 * b)
        if b == 0:
            A(f"s_add_u32 s{sU}, s{sU}, 4")
            A(f"s_add_u32 s{sT0}, s{sI}, 1")
            A(f"s_cmp_ge_u32 s{sT0}, s{sNS}")
            A("s_cbranch_scc1 L_dyn")
            Lb("L_unit")
            unit_off()
            if NSG:
                A(f"s_add_u32 s{sOff1}, s{sOff}, 0x4000")
                A(f"s_add_u32 s{sT0}, s{sU}, {US + 8 * R}")
                A(f"s_lshl_b32 s{sT0}, s{sT0}, 12")
                A(f"s_cmp_ge_u32 s{sU}, {US}")
                A(f"s_cselect_b32 s{sOff}, s{sT0}, s{sOff}")
                A(f"s_cselect_b32 s{sOff1}, 0x100000, s{sOff1}")
                A(f"s_cselect_b32 s{sSgN}, 1, 0")
        elif NSG:
            A(f"s_mov_b32 s{sOff}, s{sOff1}")
        else:
            A(f"s_add_u32 s{sOff}, s{sOff}, 0x4000")
        bar(ub, b)
        load4(2 * b, vKo, 4, sOff, fk)
        if b == 1:
            A(f"s_cmp_lg_u32 s{sEl}, 0")
            A("s_cbranch_scc1 L_notk")
            A("s_waitcnt lgkmcnt(0)")
            A(f"v_readfirstlane_b32 s{sT0}, v{vE}")
            A(f"s_cmp_lg_u32 s{sT0}, 0")
            A("s_cbranch_scc1 L_notk")
            A(f"s_add_u32 s{sT0}, s{sI}, 2")
            A(f"s_cmp_eq_u32 s{sT0}, s{sNS}")
            A("s_cbranch_scc1 L_chk")
            Lb("L_tk")
            A(f"s_mov_b32 s{sEl}, 1")
            A(f"s_mov_b64 s[{sTk}:{sTk+1}], 4")
            A(f"s_atomic_add_x2 s[{sTk}:{sTk+1}], s[{sCnt}:{sCnt+1}], 0 glc")
            Lb("L_notk")
        scores(Z)
        wavemax(Z)
        A(f"v_min_f32 v{vMx}, v{vMx}, v{vNM}")
        A(f"v_sub_f32 v{vD}, v{vMx}, v{vNM}")
        A(f"v_fma_f32 v{P}, v{Z}, s{sC}, v{vMx}")
        A(f"v_exp_f32 v{vAl}, v{vD}")
        A(f"v_exp_f32 v{P}, v{P}")
        A(f"v_mov_b32 v{vNM}, v{vMx}")
        A(f"v_cvt_pk_bf16_f32 v{Plo}, v{P}, 0")
        A(f"v_cvt_pk_bf16_f32 v{Phi}, 0, v{P}")
        A(f"v_fma_f32 v{vL}, v{vL}, v{vAl}, v{P}")
        for j in range(4):
            A(f"v_mul_f32_dpp v{D1+j}, v{vAl}, v{D1+j} quad_perm:[{j},{j},{j},{j}] row_mask:0xf bank_mask:0xf")
            A(f"v_mul_f32_dpp v{D2+j}, v{vAl}, v{D2+j} quad_perm:[{j},{j},{j},{j}] row_mask:0xf bank_mask:0xf")
        xmov()
        A("s_waitcnt vmcnt(12)")
        pv(2 * b + 1)
        bar(2 if ub == 2 else 0, b)
        load4(2 * b + 1, vVo, 8, sOff, fv)

    lds = REQ + 256
    hdr = [f"; @launch grid=(256,1,1) block=(256,1,1) lds={lds}",
           '.amdgcn_target "amdgcn-amd-amdhsa--gfx950"', ".text", f".globl {KN}", ".p2align 8",
           f".type {KN},@function", f"{KN}:"]
    A("s_load_dwordx2 s[4:5], s[0:1], 8")
    A("s_load_dwordx2 s[12:13], s[0:1], 0")
    A("s_load_dwordx2 s[8:9], s[0:1], 16")
    A("s_load_dwordx2 s[24:25], s[0:1], 40")
    A("s_load_dwordx2 s[20:21], s[0:1], 32")
    A("s_load_dwordx2 s[16:17], s[0:1], 24")
    stamp(0)
    Cm("surplus workgroups exit")
    A("s_cmp_ge_u32 s2, 256")
    A("s_cbranch_scc1 L_end")
    A(f"v_lshrrev_b32 v{vT0}, 6, v0")
    A(f"v_and_b32 v{vLane}, 63, v0")
    A(f"v_readfirstlane_b32 s{sW}, v{vT0}")
    Cm("role and (b,hkv) index")
    A(f"s_and_b32 s{sRole}, s2, 1")
    A(f"s_mul_i32 s{sT0}, s{sRole}, {px}")
    A(f"s_xor_b32 s{sBH}, s2, s{sT0}")
    A(f"s_lshr_b32 s{sBH}, s{sBH}, 1")
    Cm("lane offsets inside a 1-KiB K tile, a V tile and the Q block")
    A(f"v_bfe_u32 v{vT0}, v{vLane}, 2, 2")
    A(f"v_and_b32 v{vT1}, 48, v{vLane}")
    A(f"v_and_b32 v{vT2}, 3, v{vLane}")
    A(f"v_lshlrev_b32 v{vT1}, 2, v{vT1}")
    A(f"v_lshl_add_u32 v{vKo}, v{vT0}, 8, v{vT1}")
    A(f"v_lshl_add_u32 v{vKo}, v{vT2}, 4, v{vKo}")
    A(f"v_lshl_add_u32 v{vTm}, v{vT2}, 8, v{vT1}")
    A(f"v_lshl_add_u32 v{vTm}, v{vT0}, 4, v{vTm}")
    A(f"v_mov_b32 v{vCA}, v{vKo}")
    A(f"v_mov_b32 v{vCB}, v{vKo}")
    A(f"s_mul_i32 s{sRun}, s{sRole}, {roff if roff else 4*R*4096}")
    A(f"s_lshl_b32 s{sT0}, s{sW}, 12")
    A(f"s_add_u32 s{sRun}, s{sRun}, s{sT0}")
    A(f"s_mov_b32 s{sNext}, s{sRun}")
    seto()
    A(f"s_mov_b32 s{WA+2}, 0x100000"); A(f"s_mov_b32 s{WA+3}, 0x20000")
    A(f"s_mov_b32 s{WB+2}, 0x100000"); A(f"s_mov_b32 s{WB+3}, 0x20000")
    A("s_mov_b32 s14, 0x20000"); A("s_mov_b32 s15, 0x20000")
    A(f"s_lshl_b32 s{sQO}, s{sBH}, 10")
    A(f"s_lshl_b32 s{sT0}, s{sBH}, 20")
    A("s_waitcnt lgkmcnt(0)")
    A(f"s_add_u32 s4, s4, s{sT0}"); A("s_addc_u32 s5, s5, 0")
    A(f"s_mov_b64 s[{WA}:{WA+1}], s[4:5]")
    A(f"s_mov_b64 s[{WB}:{WB+1}], s[4:5]")
    Cm("first four K blocks; the barriers keep the four waves' requests in address order")
    refill(0)
    A(f"buffer_load_dwordx4 v[{Q}:{Q+3}], v{vTm}, s[12:15], s{sQO} offen")
    A(f"s_add_u32 s8, s8, s{sT0}"); A("s_addc_u32 s9, s9, 0")
    Cm("clear this wave's quarter of the request / ticket words")
    A(f"v_mov_b32 v{vZero}, 0")
    A(f"v_lshlrev_b32 v{vR}, 2, v{vLane}")
    A(f"s_lshl_b32 s{sT1}, s{sW}, 6")
    A(f"s_add_u32 s{sT1}, s{sT1}, {REQ}")
    A(f"v_add_u32 v{vR}, s{sT1}, v{vR}")
    A("s_mov_b64 exec, 0xffff")
    A(f"ds_write_b32 v{vR}, v{vZero}")
    A("s_mov_b64 exec, -1")
    for b in (1, 2, 3):
        if b == 3:
            A("s_waitcnt lgkmcnt(0)")
        if pb or b == 3:
            A("s_barrier")
        refill(b)
    Cm("remaining descriptors, ticket counter and flag addresses")
    A(f"v_lshlrev_b32 v{vVo}, 4, v{vLane}")
    A("s_mov_b32 s6, 0x100000"); A("s_mov_b32 s7, 0x20000")
    A("s_mov_b32 s10, 0x100000"); A("s_mov_b32 s11, 0x20000")
    A("s_mov_b32 s18, 0x20000"); A("s_mov_b32 s19, 0x20000")
    A("s_mov_b32 s22, 256"); A("s_mov_b32 s23, 0x20000")
    A("s_mov_b32 s26, 0x20000000"); A("s_mov_b32 s27, 0x20000")
    A(f"s_lshl_b32 s{sSlot}, s{sBH}, 12")
    A(f"s_mul_i32 s{sT0}, s{sBH}, {cstride}")
    A(f"s_add_u32 s{sT0}, s{sT0}, 0x400000")
    A(f"s_add_u32 s{sCnt}, s24, s{sT0}"); A(f"s_addc_u32 s{sCnt+1}, s25, 0")
    A(f"s_and_b32 s{sT0}, s{sBH}, 63")
    A(f"s_lshl_b32 s{sFlagOff}, s{sT0}, 2")
    A(f"s_lshr_b32 s{sT0}, s{sBH}, 6")
    A(f"s_lshl_b32 s{sBit}, 1, s{sT0}")
    A(f"s_add_u32 s{sDbg}, s20, s{sFlagOff}"); A(f"s_addc_u32 s{sDbg+1}, s21, 0")
    A(f"v_mov_b32 v{vR}, {REQ}")
    A(f"v_mov_b32 v{vOne}, 1")
    Cm("sLead == 0 only in wave 0 of the publishing workgroup: reset the counter, advance the epoch")
    A(f"s_xor_b32 s{sLead}, s{sRole}, {1 - cons}")
    A(f"s_or_b32 s{sLead}, s{sLead}, s{sW}")
    A(f"s_lshl_b32 s{sLead}, s{sLead}, 8")
    A(f"s_cbranch_scc1 L_nosig")
    A(f"s_mov_b32 s{sTk}, {POOL}")
    A(f"s_mov_b32 s{sTag}, 1")
    A(f"s_atomic_swap s{sTk}, s[{sCnt}:{sCnt+1}], 0 glc")
    A(f"s_atomic_add s{sTag}, s[{sCnt}:{sCnt+1}], 4 glc")
    Lb("L_nosig")
    A(f"s_mul_i32 s{sU}, s{sRole}, {4*NS0}")
    A(f"s_add_u32 s{sU}, s{sU}, s{sW}")
    unit_off()
    A(f"s_cmp_eq_u32 s{sRole}, 0")
    A(f"s_cselect_b32 s{sNS}, {NS0}, {NS1}")
    A(f"s_mov_b32 s{sC}, {f2u(C):#x}")
    A(f"s_mov_b32 s{sNC}, {f2u(-C):#x}")
    A(f"s_mov_b32 s{sI}, 0")
    A(f"s_mov_b32 s{sSg}, 0")
    A(f"v_mov_b32 v{vNM}, {BIG:#x}")
    A(f"v_mov_b32 v{vL}, 0")
    for j in range(4):
        A(f"v_mov_b32 v{D1+j}, 0"); A(f"v_mov_b32 v{D2+j}, 0")
    for j in range(8):
        A(f"v_mov_b32 v{X+j}, 0")
    if stamps:
        A("s_waitcnt vmcnt(12)")
        stamp(1)
    run_phase()
    Cm("---- unit loop: two 16-key blocks per iteration, online softmax")
    start = len(o)
    Lb("L_iter")
    step(0); step(1)
    Lb("L_next")
    if NSG:
        A(f"s_mov_b32 s{sSg}, s{sSgN}")
    A(f"s_add_u32 s{sI}, s{sI}, 1")
    A(f"s_cmp_lt_u32 s{sU}, {NUN}")
    A("s_cbranch_scc1 L_iter")
    assert check_seam([l for l in o[start:]])
    stamp(2)
    Cm("---- wave state -> LDS, combine the four waves (wave = head, lane = two dims)")
    A(f"v_add_f32_dpp v{vL}, v{vL}, v{vL} row_ror:4 row_mask:0xf bank_mask:0xf")
    A(f"v_and_b32 v{vT0}, 15, v{vLane}")
    A(f"v_lshrrev_b32 v{vT1}, 4, v{vLane}")
    A(f"v_add_f32_dpp v{vL}, v{vL}, v{vL} row_ror:8 row_mask:0xf bank_mask:0xf")
    A(f"v_lshlrev_b32 v{vT0}, 5, v{vT0}")
    A(f"v_lshl_add_u32 v{vT0}, v{vT1}, 2, v{vT0}")
    A(f"s_lshl_b32 s{sT0}, s{sW}, 11")
    A(f"v_mov_b32 v{vTm}, v{vL}")
    A(f"v_add_u32 v{vT0}, s{sT0}, v{vT0}")
    A(f"s_lshl_b32 s{sT0}, s{sW}, 5")
    A(f"v_permlane16_swap_b32 v{vTm}, v{vL}")
    for j in range(4):
        A(f"ds_write_b32 v{vT0}, v{D1+j} offset:{j*512}")
        A(f"ds_write_b32 v{vT0}, v{D2+j} offset:{j*512+16}")
    A(f"v_add_f32 v{vL}, v{vTm}, v{vL}")
    A(f"s_add_u32 s{sT0}, s{sT0}, {W*2048}")
    A(f"v_mov_b32 v{vTm}, v{vL}")
    A(f"v_lshlrev_b32 v{vT1}, 3, v{vT2}")
    A(f"v_add_u32 v{vT1}, s{sT0}, v{vT1}")
    A(f"v_permlane32_swap_b32 v{vTm}, v{vL}")
    A(f"v_add_f32 v{vL}, v{vTm}, v{vL}")
    A("s_mov_b64 exec, 15")
    A(f"ds_write_b64 v{vT1}, v[{vNM}:{vNM+1}]")
    A("s_mov_b64 exec, -1")
    A(f"s_lshl_b32 s{sT0}, s{sW}, 9")
    A(f"v_lshlrev_b32 v{vT0}, 3, v{vLane}")
    A(f"v_add_u32 v{vT0}, s{sT0}, v{vT0}")
    A(f"s_lshl_b32 s{sT0}, s{sW}, 3")
    A(f"s_add_u32 s{sT0}, s{sT0}, {W*2048}")
    A(f"v_mov_b32 v{vT1}, s{sT0}")
    A(f"v_lshlrev_b32 v{vT2}, 4, v0")
    A(f"v_mov_b32 v{vD}, {TINY:#x}")
    H = 36
    A(f"s_cmp_lg_u32 s{sRole}, {cons}")
    A("s_cbranch_scc1 L_nopre")
    A(f"buffer_load_dwordx4 v[{H}:{H+3}], v{vT2}, s[24:27], s{sSlot} offen sc1")
    Lb("L_nopre")
    A("s_waitcnt lgkmcnt(0)")
    A("s_barrier")
    O = S; ML = S + 8
    for w in range(W):
        A(f"ds_read_b64 v[{ML+2*w}:{ML+2*w+1}], v{vT1} offset:{w*32}")
    for w in range(W):
        A(f"ds_read_b64 v[{O+2*w}:{O+2*w+1}], v{vT0} offset:{w*2048}")
    G = 40
    A(f"s_waitcnt lgkmcnt({W})")
    A(f"v_min_f32 v{vMx}, v{ML}, v{ML+2}")
    A(f"v_min3_f32 v{vMx}, v{vMx}, v{ML+4}, v{ML+6}")
    for w in range(W): A(f"v_sub_f32 v{ML+2*w}, v{vMx}, v{ML+2*w}")
    for w in range(W): A(f"v_exp_f32 v{ML+2*w}, v{ML+2*w}")
    A(f"v_fma_f32 v{vAl}, v{ML}, v{ML+1}, v{vD}")
    for w in range(1, W): A(f"v_fma_f32 v{vAl}, v{ML+2*w}, v{ML+2*w+1}, v{vAl}")
    A(f"v_log_f32 v{G+2}, v{vAl}")
    A(f"v_rcp_f32 v{vAl}, v{vAl}")
    A("s_waitcnt lgkmcnt(0)")
    A(f"v_mul_f32 v{G}, v{ML}, v{O}")
    A(f"v_mul_f32 v{G+1}, v{ML}, v{O+1}")
    for w in range(1, W):
        A(f"v_fma_f32 v{G}, v{ML+2*w}, v{O+2*w}, v{G}")
        A(f"v_fma_f32 v{G+1}, v{ML+2*w}, v{O+2*w+1}, v{G+1}")
    A(f"v_sub_f32 v{G+2}, v{G+2}, v{vMx}")
    A(f"v_mov_b32 v{G+3}, s{sTag}")
    A(f"v_mul_f32 v{G}, v{vAl}, v{G}")
    A(f"v_mul_f32 v{G+1}, v{vAl}, v{G+1}")
    A(f"s_cmp_eq_u32 s{sRole}, {cons}")
    A("s_cbranch_scc1 L_consumer")
    Cm("publishing workgroup: granule {o0, o1, log2 of the total weight, epoch}")
    A(f"buffer_store_dwordx4 v[{G}:{G+3}], v{vT2}, s[24:27], s{sSlot} offen sc1")
    A("s_branch L_fin")
    Cm("---- ticket of this round: own atomic, or the words another wave shared")
    Lb("L_dyn")
    A("s_waitcnt lgkmcnt(0)")
    A(f"s_cmp_lg_u32 s{sEl}, 1")
    A("s_cbranch_scc1 L_dyn1")
    A(f"v_mov_b32 v{vRing}, s{sTk}")
    A(f"v_mov_b32 v{vRing+1}, s{sTag}")
    A("s_mov_b64 exec, 1")
    A(f"ds_write_b64 v{vR}, v[{vRing}:{vRing+1}] offset:128")
    A("s_mov_b64 exec, -1")
    A("s_branch L_dyn3")
    Lb("L_dyn1")
    A(f"s_mov_b32 s{sT1}, 0x1000000")
    Lb("L_dyn2")
    A(f"v_readfirstlane_b32 s{sTk}, v{vRing}")
    A(f"v_readfirstlane_b32 s{sTag}, v{vRing+1}")
    A(f"s_cmp_lg_u32 s{sTk}, 0")
    A("s_cbranch_scc1 L_dyn3")
    A(f"s_mov_b32 s{sTk}, 0x1000")
    A(f"s_sub_u32 s{sT1}, s{sT1}, 1")
    A("s_cbranch_scc1 L_dyn3")
    A(f"ds_read_b64 v[{vRing}:{vRing+1}], v{vR} offset:128")
    A("s_waitcnt lgkmcnt(0)")
    A("s_branch L_dyn2")
    Lb("L_dyn3")
    A(f"s_add_u32 s{sU}, s{sTk}, s{sW}")
    A(f"v_add_u32 v{vR}, 8, v{vR}")
    A("s_branch L_unit")
    if NSG:
        Cm("---- the current unit is a single block: only keep the load sequence going")
        Lb("L_skip1")
        load4(2, vKo, 4, sOff1, fk)
        load4(3, vVo, 8, sOff1, fv)
        A(f"s_cmp_lg_u32 s{sEl}, 0")
        A("s_cbranch_scc1 L_next")
        A("s_waitcnt lgkmcnt(0)")
        A(f"v_readfirstlane_b32 s{sT0}, v{vE}")
        A(f"s_cmp_lg_u32 s{sT0}, 0")
        A("s_cbranch_scc1 L_next")
        A(f"s_mov_b32 s{sEl}, 1")
        A(f"s_mov_b64 s[{sTk}:{sTk+1}], 4")
        A(f"s_atomic_add_x2 s[{sTk}:{sTk+1}], s[{sCnt}:{sCnt+1}], 0 glc")
        A("s_branch L_next")
    Cm("---- first ticket of the workgroup: wait until counter and epoch are initialised")
    Lb("L_chk")
    A(f"s_mov_b32 s{sT1}, 0x100000")
    Lb("L_chk1")
    A(f"v_readfirstlane_b32 s{sT0}, v{vFlag}")
    A(f"s_and_b32 s{sT0}, s{sT0}, s{sBit}")
    A("s_cbranch_scc1 L_tk")
    A(f"s_sub_u32 s{sT1}, s{sT1}, 1")
    A("s_cbranch_scc1 L_tk")
    A("s_sleep 8")
    A(f"buffer_load_dword v{vFlag}, v{vZero}, s[20:23], s{sFlagOff} offen sc1")
    A("s_waitcnt vmcnt(0)")
    A("s_branch L_chk1")
    Cm("---- merging workgroup: wait for the partner's granules, merge, store bf16")
    Lb("L_poll")
    A(f"buffer_load_dwordx4 v[{H}:{H+3}], v{vT2}, s[24:27], s{sSlot} offen sc1")
    Lb("L_consumer")
    A(f"s_sub_u32 s{sI}, s{sI}, 0x1000")
    A("s_waitcnt vmcnt(0)")
    A(f"v_cmp_ne_u32 vcc, s{sTag}, v{H+3}")
    A(f"s_cmp_lt_u32 s{sI}, 0x1000")
    A("s_cbranch_scc1 L_got")
    A("s_cbranch_vccnz L_poll")
    Lb("L_got")
    A(f"v_sub_f32 v{vMx}, v{G+2}, v{H+2}")
    A(f"v_exp_f32 v{vMx}, v{vMx}")
    A(f"v_sub_f32 v{H}, v{H}, v{G}")
    A(f"v_sub_f32 v{H+1}, v{H+1}, v{G+1}")
    A(f"v_lshlrev_b32 v{vT0}, 2, v0")
    A(f"v_add_f32 v{vMx}, 1.0, v{vMx}")
    A(f"v_rcp_f32 v{vMx}, v{vMx}")
    A(f"v_fma_f32 v{G}, v{vMx}, v{H}, v{G}")
    A(f"v_fma_f32 v{G+1}, v{vMx}, v{H+1}, v{G+1}")
    A(f"v_cvt_pk_bf16_f32 v{G}, v{G}, v{G+1}")
    A(f"buffer_store_dword v{G}, v{vT0}, s[16:19], s{sQO} offen")
    Lb("L_fin")
    if stamps:
        A("s_waitcnt vmcnt(0)")
        stamp(3)
        A("s_waitcnt lgkmcnt(0)")
        for i in range(8):
            A(f"v_mov_b32 v{S+i}, s{ST+i}")
        A(f"v_mov_b32 v{S+1}, s{sI}")
        A(f"s_lshl_b32 s{sT0}, s2, 2")
        A(f"s_add_u32 s{sT0}, s{sT0}, s{sW}")
        A(f"s_lshl_b32 s{sT0}, s{sT0}, 5")
        A(f"s_add_u32 s{sT0}, s{sT0}, 0x10000000")
        A("s_mov_b64 exec, 1")
        A(f"buffer_store_dwordx4 v[{S}:{S+3}], v{vZero}, s[24:27], s{sT0} offen")
        A(f"buffer_store_dwordx4 v[{S+4}:{S+7}], v{vZero}, s[24:27], s{sT0} offen offset:16")
    Lb("L_end")
    A("s_endpgm")
    body = fix_hazards(o)
    tail = ['.section .rodata,"a"', ".p2align 6", f".amdhsa_kernel {KN}",
            f"  .amdhsa_next_free_vgpr {NV + 64}", "  .amdhsa_next_free_sgpr 80", f"  .amdhsa_accum_offset {NV}",
            "  .amdhsa_group_segment_fixed_size 0", "  .amdhsa_kernarg_size 48", "  .amdhsa_user_sgpr_count 2",
            "  .amdhsa_user_sgpr_kernarg_segment_ptr 1", "  .amdhsa_system_sgpr_workgroup_id_x 1",
            "  .amdhsa_float_denorm_mode_32 3", ".end_amdhsa_kernel"]
    return "\n".join(hdr + body + tail) + "\n"

if __name__ == "__main__":
    names = []
    for spec in sys.argv[1:]:
        kw = {}
        for p in spec.split(","):
            k, v = p.split("=")
            kw[k] = int(v)
        fn = "k7_" + spec.replace(",", "-").replace("=", "") + ".s"
        open(fn, "w").write(gen(**kw))
        names.append(fn)
    print(" ".join(names))
```

```python
from gen7 import gen
txt = gen(R=24, NS0=2, NS1=2, ub=2)
lines = txt.split("\n")
head = open("standalone__gqa_softmax__sampling.s.ref").read().split("\n")
kern_hdr = [l for l in head if l.startswith(";") and "@launch" not in l and "Override" not in l and "grid=ceil" not in l]
doc = """;
; GQA decode attention: out[b,h,:] = softmax(q[b,h,:] . K[b,h/4]^T / sqrt(128)) . V[b,h/4]
;
; Work split
;   Two workgroups (ids x and x^5, 4 waves each) share one (b,hkv); keys come in 16-key blocks (4 KiB
;   of K, 4 KiB of V), the four waves of a workgroup take adjacent blocks.
;   1. run phase : every wave streams 24 K blocks (scores kept in registers), takes their maximum,
;                  then streams the matching 24 V blocks.
;   2. unit phase: the remaining 64 blocks form 32 units of two blocks with an online softmax; each
;                  workgroup takes 2 rounds of 4 units statically, the last 16 units are drawn in
;                  rounds of 4 from a per-pair ticket counter in d_ws (scalar atomic), so the
;                  workgroup with the higher memory rate takes more.
;   Four 4-KiB loads per wave stay in flight; barriers keep the waves' requests in address order.
;   The four waves are combined through LDS; the even workgroup publishes granules
;   {o0, o1, log2(total weight), epoch} in d_ws, the odd workgroup merges and writes bf16 output.
;
; Hand-off protocol (placement independent)
;   Wave 0 of the even workgroup resets the ticket counter, advances the pair's epoch word (both in
;   d_ws) and then sets the pair's bit in d_debug.  A workgroup draws its first ticket only after it
;   has seen that bit; tickets are 64-bit atomics that also return the epoch.  The merging waves poll
;   the granules (sc1 loads) until every tag equals this launch's epoch.
;
; Per 16-key block (fully contiguous 1-KiB nt loads into AGPRs)
;   QK^T : one 16x16x32 MFMA per 4 keys; rows = (key, 64-byte quarter), columns = (quarter, head);
;          three DPP adds per MFMA collect the matching quarters into one packed score register.
;   PV   : two 16x16x16 MFMAs per 4 keys; A holds bf16(p) at element e' of row (e', head), B is the
;          V data as loaded, so no transpose is needed.
;
; SGPRs: s[4:7] K srd, s[8:11] V srd, s[12:15] Q srd, s[16:19] out srd, s[20:23] dbg srd, s[24:27] ws srd,
;        s[60:63] / s[64:67] working srds of the run phase, s[68:71] block offsets, s3 wave, s28 (b,hkv),
;        s29 role, s30 unit being loaded, s32 unit offset, s33 unit iteration, s34 ticket, s35 epoch,
;        s38 / s39 +-log2(e)/sqrt(128), s[42:43] ticket counter, s[44:45] flag word, s74 run counter
; VGPRs: v1 / v2 K / V lane offsets, v[8:11] Q fragment, v[12:19] accumulators, v20 -c*max, v21 sum,
;        v[36:43] PV A operands, v[44:59] QK results, v[64:87] scores of the run, a[0:63] 4 block buffers""".split("\n")
open("standalone__gqa_softmax__sampling.s", "w").write("\n".join(kern_hdr + doc + lines))
```
